```python
import torch

def _softmax(x, axis=-1):
    return torch.softmax(x, dim=axis)

def _gelu(x):
    return torch.nn.functional.gelu(x, approximate='tanh')

def _silu(x):
    return torch.nn.functional.silu(x)

def _sigmoid(x):
    return torch.sigmoid(x)

def _layernorm(x, axis=-1, eps=1e-05):
    m = x.mean(dim=axis, keepdim=True)
    v = x.var(dim=axis, keepdim=True, unbiased=False)
    return (x - m) / torch.sqrt(v + eps)

def _scatter_add(tgt, idx, src, axis=0):
    return tgt.clone().index_add_(axis, idx, src)

def _segment_sum(src, seg, n):
    out = torch.zeros((n,) + src.shape[1:], dtype=src.dtype)
    return out.index_add_(0, seg, src)

def _pad(x, pw):
    flat = tuple((v for pair in reversed(pw) for v in pair))
    return torch.nn.functional.pad(x, flat)
kernel_name = 'recurrent_scan__memory_aug_recurrent_mem_tr__swiglu_ffn__prompt'

def setup_inputs():

    _w = lambda a: (lambda t: t.to(torch.bfloat16) if t.is_floating_point() else t)(torch.as_tensor(a))

    def _A_setup():
        B, S, Dm = (1, 2048, 640)
        H, Dh = (32, 192)
        M, seg = (8, 32)
        seg = min(seg, S)
        S = S // seg * seg
        return {'x': _w((lambda *s: torch.randn(*s, dtype=torch.bfloat16) * 0.05)(B, S, Dm)), 'mem0': _w((lambda *s: torch.randn(*s, dtype=torch.bfloat16) * 0.2)(B, M, Dm)), 'Wq': _w((lambda *s: torch.randn(*s, dtype=torch.bfloat16) * 0.8)(Dm, H, Dh) * Dm ** (-0.5)), 'Wk': _w((lambda *s: torch.randn(*s, dtype=torch.bfloat16) * 0.8)(Dm, H, Dh) * Dm ** (-0.5)), 'Wv': _w((lambda *s: torch.randn(*s, dtype=torch.bfloat16) * 0.2)(Dm, H, Dh) * Dm ** (-0.5)), 'Wo': _w((lambda *s: torch.randn(*s, dtype=torch.bfloat16) * 0.2)(H, Dh, Dm) * (H * Dh) ** (-0.5)), 'seg_len': seg}
    _A_in = _A_setup()

    def _B_setup():
        B, S, D, F = (1, 2048, 640, 1536)
        return {'x': _w((lambda *s: torch.randn(*s, dtype=torch.bfloat16) * 0.05)(B, S, D)), 'w_gate': _w((lambda *s: torch.randn(*s, dtype=torch.bfloat16) * 0.1)(D, F)), 'w_up': _w((lambda *s: torch.randn(*s, dtype=torch.bfloat16) * 0.1)(D, F)), 'w_down': _w((lambda *s: torch.randn(*s, dtype=torch.bfloat16) * 0.1)(F, D))}
    _B_in = _B_setup()
    return {'A_x': _A_in['x'], 'A_mem0': _A_in['mem0'], 'A_Wq': _A_in['Wq'], 'A_Wk': _A_in['Wk'], 'A_Wv': _A_in['Wv'], 'A_Wo': _A_in['Wo'], 'A_seg_len': _A_in['seg_len'], 'B_x': _B_in['x'], 'B_w_gate': _B_in['w_gate'], 'B_w_up': _B_in['w_up'], 'B_w_down': _B_in['w_down']}

def reference(A_x, A_mem0, A_Wq, A_Wk, A_Wv, A_Wo, A_seg_len, B_x, B_w_gate, B_w_up, B_w_down):

    def _A_ref(x, mem0, Wq, Wk, Wv, Wo, seg_len):
        B, S, Dm = x.shape
        H, Dh = (Wq.shape[1], Wq.shape[2])
        M = mem0.shape[1]
        scale = Dh ** (-0.5)
        n_seg = S // seg_len
        L = M + seg_len
        idx = torch.arange(L)
        mask = (idx[:, None] < M) | (idx[:, None] >= idx[None, :])
        mem = mem0
        outs = []
        for s in range(n_seg):
            xs = x[:, s * seg_len:(s + 1) * seg_len, :].clone()
            h = torch.concatenate([mem, xs], axis=1)
            q = torch.einsum('btd,dhe->bhte', h, Wq)
            k = torch.einsum('btd,dhe->bhte', h, Wk)
            v = torch.einsum('btd,dhe->bhte', h, Wv)
            scores = torch.einsum('bhqe,bhke->bhqk', q, k) * scale
            scores = torch.where(mask[None, None], scores, -1000000000.0)
            p = _softmax(scores, axis=-1)
            o = torch.einsum('bhqk,bhke->bhqe', p, v)
            o = torch.einsum('bhte,hed->btd', o, Wo)
            mem = o[:, :M, :].clone()
            outs.append(o[:, M:, :])
        return torch.concatenate(outs, axis=1)

    def _B_ref(x, w_gate, w_up, w_down):
        g = _silu(x @ w_gate)
        u = x @ w_up
        return g * u @ w_down
    x = A_x
    xn = _layernorm(x, axis=-1)
    s = _A_ref(xn, A_mem0, A_Wq, A_Wk, A_Wv, A_Wo, A_seg_len)
    g = _silu(_B_ref(xn, B_w_gate, B_w_up, B_w_down))
    return x + s * g
```

```python
import re

TRANS = ('v_exp_', 'v_log_', 'v_rcp_', 'v_rsq_', 'v_sqrt_', 'v_sin_', 'v_cos_')


def regs_of(tok):
    tok = tok.strip()
    if tok.startswith('-'):
        tok = tok[1:]
    if tok.startswith('|'):
        tok = tok.strip('|')
    m = re.fullmatch(r'([vas])(\d+)', tok)
    if m:
        return {(m.group(1), int(m.group(2)))}
    m = re.fullmatch(r'([vas])\[(\d+):(\d+)\]', tok)
    if m:
        return {(m.group(1), i) for i in range(int(m.group(2)), int(m.group(3)) + 1)}
    if tok == 'vcc':
        return {('s', 'vcc')}
    if tok in ('vcc_lo', 'vcc_hi'):
        return {('s', 'vcc')}
    if tok in ('exec', 'exec_lo', 'exec_hi'):
        return {('s', 'exec')}
    if tok == 'm0':
        return {('s', 'm0')}
    return set()


class Ins:
    __slots__ = ('text', 'op', 'cls', 'dst', 'src', 'srcc', 'sdata', 'passes', 'dpp', 'ws', 'target', 'label', 'lds', 'ab')

    def __init__(self, text):
        self.text = text
        self.label = None
        self.target = None
        self.dst = set()
        self.src = set()
        self.srcc = set()
        self.ab = set()
        self.sdata = set()
        self.passes = 0
        self.dpp = False
        self.lds = False
        self.ws = 1
        t = text.split(';')[0].strip()
        if not t or t.startswith('.'):
            self.op = None
            self.cls = 'none'
            self.ws = 0
            return
        if t.endswith(':'):
            self.op = None
            self.cls = 'label'
            self.label = t[:-1]
            self.ws = 0
            return
        parts = t.split(None, 1)
        op = self.op = parts[0]
        rest = parts[1] if len(parts) > 1 else ''
        qp = 'quad_perm' in rest
        rest = re.sub(r'quad_perm:\[[0-9,]*\]', 'quad_perm', rest)
        rest = re.sub(r'op_sel(_hi)?:\[[0-9,]*\]', 'op_sel', rest)
        ops = [o.strip() for o in rest.split(',')] if rest else []
        mods = ''
        if ops:
            last = ops[-1].split(None, 1)
            ops[-1] = last[0]
            mods = last[1] if len(last) > 1 else ''
        R = [regs_of(o) for o in ops]
        if op.startswith('v_mfma') or op.startswith('v_smfmac'):
            self.cls = 'mfma'
            self.passes = 8 if '32x32' in op else 4
            self.dst = R[0]
            if op.startswith('v_smfmac'):
                self.srcc = set(R[0])
                self.ab = R[1] | R[2] | R[3]
            else:
                self.srcc = R[3]
                self.ab = R[1] | R[2]
            self.src = self.ab | self.srcc
        elif op.startswith('v_'):
            self.cls = 'valu'
            if 'dpp' in op or 'quad_perm' in mods or 'row_' in mods:
                self.dpp = True
            if op.startswith('v_permlane') and 'swap' in op:
                self.dst = R[0] | R[1]
                self.src = R[0] | R[1]
            elif op.startswith('v_cmp'):
                self.dst = set(R[0])
                if op.startswith('v_cmpx'):
                    self.dst |= {('s', 'exec')}
                self.src = set().union(*R[1:])
            elif '_co_' in op or op.startswith('v_div_scale'):
                self.dst = R[0] | R[1]
                self.src = set().union(*R[2:])
            else:
                self.dst = set(R[0])
                self.src = set().union(*R[1:]) if len(R) > 1 else set()
                if self.dpp or op.startswith('v_fmac') or op.startswith('v_mac') or op.startswith('v_writelane'):
                    self.src |= R[0]
                if op.startswith('v_cndmask') and len(ops) == 3:
                    self.src |= {('s', 'vcc')}
        elif op.startswith('buffer_') or op.startswith('global_'):
            self.cls = 'vmem'
            words = (mods + ' ' + ' '.join(ops)).split()
            self.lds = 'lds' in mods.split() or '_lds_' in op
            if '_load' in op:
                if self.lds:
                    self.src = set().union(*R) | {('s', 'm0')}
                else:
                    self.dst = set(R[0])
                    self.src = set().union(*R[1:])
            else:
                self.src = set().union(*R)
                d = R[0] if op.startswith('buffer_') else R[1]
                if 'x3' in op or 'x4' in op:
                    self.sdata = set(d)
                if 'atomic' in op and 'sc0' in words:
                    self.dst = set(R[0])
        elif op.startswith('ds_'):
            self.cls = 'ds'
            if op.startswith('ds_read') or 'permute' in op or 'swizzle' in op:
                self.dst = set(R[0])
                self.src = set().union(*R[1:])
            else:
                self.src = set().union(*R)
        elif op.startswith('s_'):
            self.cls = 'salu'
            if op == 's_nop':
                self.ws = int(ops[0], 0) + 1
            elif op.startswith('s_cbranch') or op == 's_branch':
                self.target = ops[0]
            elif op.startswith('s_cmp') or op.startswith('s_waitcnt') or op in ('s_barrier', 's_endpgm', 's_sleep', 's_setprio'):
                self.src = set().union(*R) if R else set()
            else:
                self.dst = set(R[0]) if R else set()
                self.src = set().union(*R[1:]) if len(R) > 1 else set()
                if 'saveexec' in op:
                    self.dst |= {('s', 'exec')}
        else:
            raise ValueError('unknown op ' + text)


def vg(s):
    return {r for r in s if r[0] in 'va'}


def sg(s):
    return {r for r in s if r[0] == 's'}


def need(p, c):
    n = 0
    if p.cls == 'valu':
        pv, ps = vg(p.dst), sg(p.dst)
        if c.cls == 'mfma':
            if pv & c.src:
                n = max(n, 2)
            if ('s', 'exec') in ps:
                n = max(n, 4)
        elif c.cls == 'valu':
            if pv & c.src:
                if c.dpp or c.op.startswith('v_permlane'):
                    n = max(n, 2)
                if c.op.startswith('v_readfirstlane') or c.op.startswith('v_readlane'):
                    n = max(n, 1)
                if p.op.startswith(TRANS):
                    n = max(n, 1)
                if 'op_sel' in p.text or 'sdwa' in p.text:
                    n = max(n, 1)
            if ps & c.src:
                n = max(n, 4 if 'lane' in c.op else 2)
            if ('s', 'exec') in ps:
                n = max(n, 5 if c.dpp else 4 if 'lane' in c.op else 0)
        elif c.cls == 'vmem':
            if ps & c.src:
                n = max(n, 5)
    elif p.cls == 'mfma':
        big = 12 if p.passes == 8 else 8
        if c.cls == 'mfma':
            if p.dst & c.ab:
                n = max(n, big)
            if p.dst & c.srcc:
                if not (p.dst == c.srcc and p.passes == c.passes):
                    n = max(n, big - 2)
            elif p.dst & c.dst:
                n = max(n, big)
        elif c.cls == 'valu':
            if p.dst & (c.src | c.dst):
                n = max(n, big)
            if p.srcc & c.dst:
                n = max(n, 7 if p.passes == 8 else 3)
        elif c.cls in ('vmem', 'ds'):
            if p.dst & (c.src | c.dst):
                n = max(n, big)
    elif p.cls == 'vmem':
        if p.sdata and c.cls == 'valu' and (p.sdata & c.dst):
            n = max(n, 2)
        elif p.sdata and (p.sdata & c.dst):
            n = max(n, 1)
    elif p.cls == 'salu':
        if ('s', 'm0') in p.dst and c.cls == 'vmem' and c.lds:
            n = max(n, 1)
    return n


def pad_hazards(lines):
    ins = [Ins(l) for l in lines]
    labels = {x.label: i for i, x in enumerate(ins) if x.label}
    srcs = {}
    for i, x in enumerate(ins):
        if x.target:
            assert x.target in labels, x.text
            srcs.setdefault(labels[x.target], []).append(i)
    extra = [0] * len(ins)
    total = 0

    def preds(i):
        out = []
        if i > 0 and ins[i - 1].op not in ('s_branch', 's_endpgm'):
            out.append(i - 1)
        out += srcs.get(i, [])
        return out

    for i, c in enumerate(ins):
        if c.cls not in ('valu', 'mfma', 'vmem', 'ds'):
            continue
        worst = 0
        stack = [(j, 0, (0 if False else -99)) for j in preds(i)]
        seen = set()
        while stack:
            j, d, dm = stack.pop()
            p = ins[j]
            if p.cls == 'mfma':
                d = max(d, p.passes + dm - 1)
            if d >= 12 or (j, d, dm) in seen:
                continue
            seen.add((j, d, dm))
            if p.cls in ('valu', 'mfma', 'vmem', 'salu'):
                worst = max(worst, need(p, c) - d)
            nd = d + p.ws + extra[j]
            if p.cls == 'mfma':
                dm = d + 1
            for k in preds(j):
                stack.append((k, nd, dm))
        if worst > 0:
            extra[i] = worst
            total += worst
    out = []
    for i, x in enumerate(ins):
        if extra[i]:
            out.append(f's_nop {extra[i] - 1}')
        out.append(x.text)
    return out, total


class Asm:
    def __init__(self):
        self.l = []
        self.uid = 0

    def __call__(self, *lines):
        for s in lines:
            for t in s.split('\n'):
                t = t.strip()
                if t:
                    self.l.append(t)

    def lab(self, base):
        self.uid += 1
        return f'L{base}_{self.uid}'


def v(i, n=1):
    return f'v{i}' if n == 1 else f'v[{i}:{i + n - 1}]'


def a(i, n=1):
    return f'a{i}' if n == 1 else f'a[{i}:{i + n - 1}]'


def s(i, n=1):
    return f's{i}' if n == 1 else f's[{i}:{i + n - 1}]'
```

```python
from asmlib import v, a, s

WS_BYTES = 268435456
BUDGET = 30000
NARR = 230

XN_S = 40960
QKV_S = 32 * 12288
UX_S = 40 * 32768
HH_S = 98304
GG_S = 40960
PX_S = 4 * 20480
PP_S = 20480
MM_S = 10240
UM_S = 40 * 8192

FG = 0
FU = 4096
FF1 = 4608
FF2 = 4864
DBA = 8192
DBB = DBA + 66 * 128
PROF = 32768
XN = 1 << 20
QX = XN + 65 * XN_S
KX = QX + 64 * QKV_S
VX = KX + 65 * QKV_S
UX = VX + 65 * QKV_S
HH = UX + 64 * UX_S
GG = HH + 65 * HH_S
PX = GG + 64 * GG_S
PP = PX + 64 * PX_S
MM = PP + 66 * PP_S
UM = MM + 67 * MM_S
WS_END = UM + 66 * UM_S
assert WS_END <= WS_BYTES
for _b in (XN, QX, KX, VX, UX, HH, GG, PX, PP, MM, UM):
    assert _b % 1024 == 0

OOB = 0x7ff00000
LOG2E = 1.4426950408889634


def f32(x):
    import struct
    return '0x%08x' % struct.unpack('<I', struct.pack('<f', x))[0]


def srd(A, reg, karg, nbytes):
    A(f's_load_dwordx2 {s(reg, 2)}, s[0:1], {karg}')
    A(f's_mov_b32 {s(reg + 2)}, {nbytes}')
    A(f's_mov_b32 {s(reg + 3)}, 0x20000')


def srd_fin(A, *regs):
    A('s_waitcnt lgkmcnt(0)')
    for r in regs:
        A(f's_and_b32 {s(r + 1)}, {s(r + 1)}, 0xffff')


def lane0_off(A, vd, sval):
    A(f'v_mov_b32 {v(vd)}, {sval}')
    A(f'v_mov_b32 v1, {OOB}')
    A(f'v_cmp_eq_u32 vcc, 0, v0')
    A(f'v_cndmask_b32 {v(vd)}, v1, {v(vd)}, vcc')


def arrive(A, nafter, vt):
    l = A.lab('arr')
    A(f's_waitcnt vmcnt({nafter})')
    A('s_barrier')
    A('s_cmp_lg_u32 s28, 0')
    A(f's_cbranch_scc1 {l}')
    A(f'v_mov_b32 {v(vt)}, 1')
    A('s_mov_b64 exec, 1')
    A(f'buffer_atomic_add {v(vt)}, off, s[20:23], 0 sc1')
    A('s_mov_b64 exec, -1')
    A(f'{l}:')


def retry(A, back, fwd, sleep=0):
    A('s_cmp_eq_u32 s25, 0')
    A(f's_cbranch_scc1 {fwd}')
    A('s_sub_u32 s25, s25, 1')
    if sleep:
        A(f's_sleep {sleep}')
    A(f's_branch {back}')


def gwait(A, vt):
    l0, l1 = A.lab('gw'), A.lab('gwd')
    A('s_cmp_lg_u32 s28, 0')
    A(f's_cbranch_scc1 {l1}')
    A(f'{l0}:')
    A(f'buffer_load_dword {v(vt)}, off, s[20:23], 0 sc1')
    A('s_waitcnt vmcnt(0)')
    A(f'v_cmp_gt_u32 vcc, {NARR}, {v(vt)}')
    A(f's_cbranch_vccz {l1}')
    retry(A, l0, l1, 4)
    A(f'{l1}:')
    A('s_barrier')


def poll_block(A, vt, voff, starget, sleep=1):
    l0, l1 = A.lab('pl'), A.lab('pld')
    A(f'{l0}:')
    A(f'buffer_load_dword {v(vt)}, {v(voff)}, s[4:7], 0 offen sc1')
    A('s_waitcnt vmcnt(0)')
    A(f'v_cmp_gt_u32 vcc, {starget}, {v(vt)}')
    A(f's_cbranch_vccz {l1}')
    retry(A, l0, l1, sleep)
    A(f'{l1}:')


class SOff:
    def __init__(self, A, reg=31):
        self.A, self.reg, self.cur = A, reg, None

    def at(self, off):
        if self.cur is None or not (0 <= off - self.cur <= 4095):
            self.A(f's_mov_b32 {s(self.reg)}, {off}')
            self.cur = off
        d = off - self.cur
        return f'{s(self.reg)} offen' + (f' offset:{d}' if d else '')


def run_loader(A, groups, depth, between=None):
    n = len(groups)
    for g in range(min(depth, n)):
        groups[g][1](g % depth)
    if between:
        between(sum(groups[g][0] for g in range(min(depth, n))))
    for g in range(n):
        after = sum(groups[k][0] for k in range(g + 1, min(g + depth, n)))
        assert after <= 63
        A(f's_waitcnt vmcnt({after})')
        groups[g][2](g % depth)
        if g + depth < n:
            groups[g + depth][1](g % depth)


def put(A, dst, hi_src, lo_src, sel, tmp):
    if dst[0] == 'v':
        A(f'v_perm_b32 {v(dst[1])}, {hi_src}, {lo_src}, {sel}')
    else:
        A(f'v_perm_b32 {v(tmp)}, {hi_src}, {lo_src}, {sel}')
        A(f'v_accvgpr_write_b32 {a(dst[1])}, {v(tmp)}')


def prof(A, slot, vt=None):
    if A.opts.get('prof') != '1':
        return
    A.prof_used = True
```

```python
from asmlib import v, a, s
from layout import *

MF = 'v_mfma_f32_32x32x16_bf16'


def pair_groups(A, nks, load, dest, T0=80, tmp=144, half_sel=None):
    groups = []
    for ks in range(nks):
        def issue(slot, ks=ks):
            for e in range(8):
                load(ks, e, T0 + 8 * slot + e)

        def post(slot, ks=ks):
            b = T0 + 8 * slot
            k = 0
            for T in ((0, 1) if half_sel is None else (0,)):
                f, i = dest(ks, T)
                sel = half_sel if half_sel else ('s29', 's30')[T]
                for q in range(4):
                    put(A, (f, i + q), v(b + 2 * q + 1), v(b + 2 * q), sel, tmp + (k & 1))
                    k += 1
        groups.append((8, issue, post))
    return groups


def silu_mul(A, x, t, mul=None):
    for i, r in enumerate(x):
        A(f'v_mul_f32 {v(t[i])}, {f32(-LOG2E)}, {v(r)}')
    for i, r in enumerate(x):
        A(f'v_exp_f32 {v(t[i])}, {v(t[i])}')
    for i, r in enumerate(x):
        A(f'v_add_f32 {v(t[i])}, 1.0, {v(t[i])}')
    for i, r in enumerate(x):
        A(f'v_rcp_f32 {v(t[i])}, {v(t[i])}')
    if mul:
        for i, r in enumerate(x):
            A(f'v_mul_f32 {v(r)}, {v(r)}, {v(mul[i])}')
    for i, r in enumerate(x):
        A(f'v_mul_f32 {v(r)}, {v(r)}, {v(t[i])}')


def role_g1(A, ffn):
    L = 'Lf1' if ffn else 'Lg1'
    A(f'{L}:')
    A('v_and_b32 v9, 31, v0')
    A('v_lshrrev_b32 v10, 5, v0')
    A('v_lshlrev_b32 v6, 4, v0')
    if not ffn:
        A('''
        s_load_dwordx2 s[8:9], s[0:1], 16
        s_load_dwordx2 s[12:13], s[0:1], 24
        s_load_dwordx2 s[14:15], s[0:1], 32
        s_sub_u32 s32, s27, 13
        s_lshl_b32 s32, s32, 2
        s_add_u32 s32, s32, s28
        s_mul_i32 s33, s32, 57
        s_lshr_b32 s33, s33, 9
        s_mul_i32 s34, s33, 9
        s_sub_u32 s34, s32, s34
        s_lshl_b32 s35, s26, 2
        s_add_u32 s33, s33, s35
        s_mul_i32 s35, s34, 11
        s_lshr_b32 s35, s35, 5
        s_mul_i32 s36, s35, 3
        s_sub_u32 s36, s34, s36
        s_mov_b32 s10, 7864320
        s_mov_b32 s11, 0x20000
        s_waitcnt lgkmcnt(0)
        s_cmp_eq_u32 s35, 1
        s_cselect_b32 s8, s12, s8
        s_cselect_b32 s9, s13, s9
        s_cmp_eq_u32 s35, 2
        s_cselect_b32 s8, s14, s8
        s_cselect_b32 s9, s15, s9
        s_and_b32 s9, s9, 0xffff
        ''')
        A(f's_lshl_b32 s46, s33, 7\ns_lshl_b32 s47, s34, 2\ns_add_u32 s46, s46, s47\ns_add_u32 s46, s46, {FG}')
        lane0_off(A, 5, 's46')
        A('''
        v_and_b32 v11, 24, v9
        v_bfe_u32 v12, v9, 2, 1
        v_and_b32 v13, 3, v9
        v_lshl_add_u32 v12, v13, 1, v12
        v_add_u32 v11, v11, v12
        s_cmp_eq_u32 s35, 0
        s_cselect_b64 vcc, -1, 0
        v_cndmask_b32 v11, v9, v11, vcc
        s_mul_i32 s46, s33, 384
        s_lshl_b32 s47, s36, 7
        s_add_u32 s46, s46, s47
        v_lshl_add_u32 v2, v11, 2, s46
        v_mul_u32_u24 v12, 98304, v10
        v_add_u32 v2, v2, v12
        ''')
        lq, lk, ld = A.lab('gq'), A.lab('gk'), A.lab('gd')
        A(f'''
        s_mul_i32 s37, s33, 12288
        s_cmp_eq_u32 s35, 0
        s_cbranch_scc1 {lq}
        s_cmp_eq_u32 s35, 1
        s_cbranch_scc1 {lk}
        v_and_b32 v11, 19, v9
        v_bfe_u32 v12, v9, 2, 1
        v_lshl_add_u32 v11, v12, 3, v11
        v_bfe_u32 v12, v9, 3, 1
        v_lshl_add_u32 v11, v12, 2, v11
        v_lshlrev_b32 v11, 4, v11
        v_lshl_add_u32 v4, v10, 9, v11
        s_movk_i32 s38, 1024
        s_lshl_b32 s46, s36, 12
        s_add_u32 s37, s37, {VX}
        s_branch {ld}
        {lq}:
        v_lshrrev_b32 v11, 3, v9
        v_mul_u32_u24 v11, 3072, v11
        v_and_b32 v12, 7, v9
        v_lshl_add_u32 v11, v12, 4, v11
        v_lshl_add_u32 v4, v10, 7, v11
        s_movk_i32 s38, 256
        s_lshl_b32 s46, s36, 10
        s_add_u32 s37, s37, {QX}
        s_branch {ld}
        {lk}:
        v_and_b32 v11, 1, v9
        v_mul_u32_u24 v11, 6144, v11
        v_lshrrev_b32 v12, 1, v9
        v_lshl_add_u32 v11, v12, 4, v11
        v_lshl_add_u32 v4, v10, 8, v11
        s_movk_i32 s38, 512
        s_lshl_b32 s46, s36, 11
        s_add_u32 s37, s37, {KX}
        {ld}:
        s_add_u32 s37, s37, s46
        s_mov_b32 s42, {QKV_S}
        ''')
        so = SOff(A)

        def load(ks, e, t):
            A(f'buffer_load_dword {v(t)}, v2, s[8:11], {so.at((16 * ks + e) * 12288)}')
        nst = 4
    else:
        A(f'''
        s_load_dwordx2 s[8:9], s[0:1], 64
        s_load_dwordx2 s[12:13], s[0:1], 72
        s_sub_u32 s32, s2, {26 * 8}
        s_lshl_b32 s32, s32, 2
        s_add_u32 s32, s32, s28
        s_lshl_b32 s46, s32, 2
        s_add_u32 s46, s46, {FF1}
        ''')
        lane0_off(A, 5, 's46')
        A(f'''
        v_and_b32 v11, 15, v9
        s_lshl_b32 s46, s32, 6
        v_lshl_add_u32 v11, v11, 2, s46
        v_mul_u32_u24 v12, 24576, v10
        v_add_u32 v12, v11, v12
        v_mov_b32 v13, 0
        s_waitcnt lgkmcnt(0)
        v_mov_b32 v2, s8
        v_mov_b32 v3, s9
        v_mov_b32 v14, s12
        v_mov_b32 v15, s13
        v_cmp_lt_u32 vcc, 15, v9
        v_cndmask_b32 v2, v2, v14, vcc
        v_cndmask_b32 v3, v3, v15, vcc
        v_lshl_add_u64 v[2:3], v[2:3], 0, v[12:13]
        s_movk_i32 s46, 6144
        s_mov_b32 s47, 0
        s_movk_i32 s48, 30720
        s_mov_b32 s49, 0
        v_mov_b32 v4, v6
        s_movk_i32 s38, 1024
        s_lshl_b32 s37, s32, 11
        s_add_u32 s37, s37, {HH}
        s_mov_b32 s42, {HH_S}
        ''')

        def load(ks, e, t):
            A(f'global_load_dword {v(t)}, v[2:3], off' + (' offset:3072' if e & 1 else ''))
            if e & 1 and not (ks == 39 and e == 7):
                A(f'v_lshl_add_u64 v[2:3], v[2:3], 0, {"s[48:49]" if e == 7 else "s[46:47]"}')
        nst = 2

    def wreg(ks, T):
        i = 2 * ks + T
        return ('a', 4 * i) if i < 64 else ('v', 192 + 4 * (i - 64))

    def wname(ks, T):
        f, i = wreg(ks, T)
        return f'{f}[{i}:{i + 3}]'

    A('v_mov_b32 v8, 0')
    A('buffer_store_dword v8, v5, s[4:7], 0 offen sc1')
    run_loader(A, pair_groups(A, 40, load, wreg), 8, between=lambda n: arrive(A, min(n, 63), 8))
    gwait(A, 8)

    def dma():
        for m in range(3):
            A(f's_add_u32 m0, s44, {4096 * m}')
            A(f's_add_u32 s46, s43, {4096 * m}')
            for i in range(4 if m < 2 else 2):
                A(f'buffer_load_dwordx4 v6, s[4:7], s46 offen offset:{1024 * i} sc1 lds')
    A(f'''
    s_mul_i32 s44, s28, 10240
    s_add_u32 s43, s44, {XN}
    ''')
    dma()
    A(f'''
    s_mov_b32 s45, 0
    s_waitcnt vmcnt(0)
    {L}_loop:
    s_waitcnt vmcnt({nst + 1})
    s_barrier
    v_add_u32 v7, s45, v6
    s_xor_b32 s45, s45, {XN_S}
    s_mul_i32 s44, s28, 10240
    s_add_u32 s44, s44, s45
    s_add_u32 s43, s43, {XN_S}
    ''')
    for k in range(3):
        A(f'ds_read_b128 {v(48 + 4 * k, 4)}, v7 offset:{1024 * k}')
    dma()
    A('v_mov_b32 v8, s24')
    for ks in range(40):
        if ks + 3 < 40:
            A(f'ds_read_b128 {v(48 + 4 * ((ks + 3) % 4), 4)}, v7 offset:{1024 * (ks + 3)}')
        A(f's_waitcnt lgkmcnt({min(3, 39 - ks)})')
        B = v(48 + 4 * (ks % 4), 4)
        for T in range(2):
            D = v(16 + 16 * T, 16)
            A(f'{MF} {D}, {wname(ks, T)}, {B}, {D if ks else 0}')
        if ks == 12:
            A('s_waitcnt vmcnt(10)')
            A('buffer_store_dword v8, v5, s[4:7], 0 offen sc1')
    A('s_add_u32 s39, s37, s38\ns_add_u32 s40, s39, s38\ns_add_u32 s41, s40, s38')
    so_a = ['s37', 's39', 's40', 's41']
    if not ffn:
        for aa in range(4):
            for c in range(4):
                r = 4 * aa + c
                A(f'v_cvt_pk_bf16_f32 {v(64 + r)}, {v(16 + r)}, {v(32 + r)}')
            A(f'buffer_store_dwordx4 {v(64 + 4 * aa, 4)}, v4, s[4:7], {so_a[aa]} offen sc1')
    else:
        for aa in range(2):
            g = [16 + 4 * aa + c for c in range(4)] + [32 + 4 * aa + c for c in range(4)]
            u = [x + 8 for x in g]
            silu_mul(A, g, list(range(72, 80)), u)
            for c in range(4):
                A(f'v_cvt_pk_bf16_f32 {v(64 + 4 * aa + c)}, {v(g[c])}, {v(g[4 + c])}')
            A(f'buffer_store_dwordx4 {v(64 + 4 * aa, 4)}, v4, s[4:7], {so_a[aa]} offen sc1')
    A(f'''
    s_add_u32 s37, s37, s42
    s_add_u32 s24, s24, 1
    s_cmp_lt_u32 s24, 64
    s_cbranch_scc1 {L}_loop
    v_mov_b32 v8, 64
    s_waitcnt vmcnt(0)
    buffer_store_dword v8, v5, s[4:7], 0 offen sc1
    s_endpgm
    ''')


def stream_loop(A, L, nld, ldreg, block, epilogue, seg_stride):
    def loads(lo, hi, cond):
        for ks in range(lo, hi):
            A(f'buffer_load_dwordx4 {v(ldreg + 4 * ks, 4)}, v6, s[4:7], {s(43 + ks // 4)} offen offset:{1024 * (ks % 4)} sc1')

    def bump(first):
        if not first:
            A(f's_add_u32 s43, s43, {seg_stride}')
        for k in range(1, (nld + 3) // 4):
            A(f's_add_u32 {s(43 + k)}, s43, {4096 * k}')
    A('s_mov_b32 s50, 1')
    poll_block(A, 9, 7, 's50')
    bump(True)
    loads(0, nld, False)
    A('buffer_load_dword v9, v7, s[4:7], 0 offen sc1')
    A(f'{L}_loop:')
    bump(False)
    A(f'''
    v_mov_b32 v8, s24
    s_add_u32 s50, s24, 2
    s_min_u32 s50, s50, 64
    s_waitcnt vmcnt(0)
    buffer_store_dword v8, v5, s[4:7], 0 offen sc1
    v_cmp_gt_u32 vcc, s50, v9
    s_cmp_eq_u64 vcc, 0
    s_cselect_b32 s51, 1, 0
    ''')
    for ks in range(nld):
        block(ks)
        l = A.lab('pf')
        A(f's_cmp_eq_u32 s51, 0\ns_cbranch_scc1 {l}')
        loads(ks, ks + 1, True)
        A(f'{l}:')
    epilogue()
    l = A.lab('late')
    A(f's_cmp_eq_u32 s51, 1\ns_cbranch_scc1 {l}')
    poll_block(A, 9, 7, 's50')
    loads(0, nld, False)
    A(f'''
    {l}:
    buffer_load_dword v9, v7, s[4:7], 0 offen sc1
    s_add_u32 s24, s24, 1
    s_cmp_lt_u32 s24, 64
    s_cbranch_scc1 {L}_loop
    v_mov_b32 v8, 64
    s_waitcnt vmcnt(0)
    buffer_store_dword v8, v5, s[4:7], 0 offen sc1
    s_endpgm
    ''')


def role_u(A):
    A('Lu:')
    srd(A, 8, 40, 7864320)
    A(f'''
    s_sub_u32 s33, s27, 22
    s_lshl_b32 s46, s26, 2
    s_add_u32 s33, s33, s46
    v_and_b32 v9, 31, v0
    v_lshrrev_b32 v10, 5, v0
    v_lshlrev_b32 v6, 4, v0
    s_lshl_b32 s46, s28, 7
    s_lshl_b32 s47, s33, 2
    s_add_u32 s46, s46, s47
    s_add_u32 s46, s46, {FU}
    ''')
    lane0_off(A, 5, 's46')
    A(f'''
    v_and_b32 v11, 3, v0
    v_min_u32 v11, 2, v11
    s_lshl_b32 s46, s33, 7
    s_add_u32 s46, s46, {FG + 24}
    v_lshl_add_u32 v7, v11, 2, s46
    s_mul_i32 s46, s33, 245760
    v_mul_u32_u24 v11, 10240, v10
    v_lshl_add_u32 v11, v9, 2, v11
    v_add_u32 v11, s46, v11
    s_lshl_b32 s47, s28, 8
    v_add_u32 v2, s47, v11
    s_lshr_b32 s47, s28, 1
    s_lshl_b32 s47, s47, 7
    s_add_u32 s47, s47, 1024
    v_add_u32 v3, s47, v11
    s_bitcmp1_b32 s28, 0
    s_cselect_b32 s52, s30, s29
    v_lshrrev_b32 v11, 3, v9
    v_lshlrev_b32 v11, 15, v11
    v_and_b32 v12, 7, v9
    v_lshl_add_u32 v11, v12, 4, v11
    v_lshl_add_u32 v4, v10, 8, v11
    s_lshl_b32 s37, s33, 10
    s_add_u32 s37, s37, {UX}
    s_lshl_b32 s46, s28, 18
    s_lshr_b32 s47, s28, 1
    s_add_u32 s47, s47, 8
    s_lshl_b32 s47, s47, 17
    s_and_b32 s48, s28, 1
    s_lshl_b32 s48, s48, 7
    s_add_u32 s47, s47, s48
    s_add_u32 s39, s37, s47
    s_add_u32 s37, s37, s46
    s_mul_i32 s43, s33, 12288
    s_add_u32 s43, s43, {VX}
    v_mov_b32 v8, 0
    buffer_store_dword v8, v5, s[4:7], 0 offen sc1
    ''')
    srd_fin(A, 8)
    so = SOff(A)
    groups = []
    for blk in range(3):
        def load(ks, e, t, blk=blk):
            A(f'buffer_load_dword {v(t)}, {"v3" if blk == 2 else "v2"}, s[8:11], {so.at((16 * ks + e) * 1280 + (128 if blk == 1 else 0))}')
        groups += pair_groups(A, 12, load, lambda ks, T, blk=blk: ('a', 4 * ((2 * blk + T) * 12 + ks)),
                              half_sel='s52' if blk == 2 else None)
    run_loader(A, groups, 8, between=lambda n: arrive(A, min(n, 63), 8))
    gwait(A, 8)

    def block(ks):
        for tt in range(5):
            D = v(64 + 16 * tt, 16)
            A(f'{MF} {D}, {v(16 + 4 * ks, 4)}, {a(4 * (tt * 12 + ks), 4)}, {D if ks else 0}')

    def epilogue():
        A('s_add_u32 s38, s37, 131072')
        for tt in range(5):
            so_t = ['s37', 's37', 's38', 's38', 's39'][tt]
            for c in range(2):
                p = 144 + 8 * tt + 4 * c
                for q in range(4):
                    r = 64 + 16 * tt + 8 * c + 2 * q
                    A(f'v_cvt_pk_bf16_f32 {v(p + q)}, {v(r)}, {v(r + 1)}')
                off = (128 * (tt % 2) if tt < 4 else 0) + 512 * c
                A(f'buffer_store_dwordx4 {v(p, 4)}, v4, s[4:7], {so_t} offen offset:{off} sc1')
        A(f's_add_u32 s37, s37, {UX_S}\ns_add_u32 s39, s39, {UX_S}')
    stream_loop(A, 'Lu', 12, 16, block, epilogue, QKV_S)


def role_f2(A):
    A('Lf2:')
    srd(A, 8, 80, 1966080)
    A(f'''
    s_sub_u32 s33, s2, {26 * 8 + 12}
    v_and_b32 v9, 31, v0
    v_lshrrev_b32 v10, 5, v0
    v_lshlrev_b32 v6, 4, v0
    s_lshl_b32 s34, s33, 2
    s_add_u32 s34, s34, s28
    s_lshl_b32 s46, s34, 2
    s_add_u32 s46, s46, {FF2}
    ''')
    lane0_off(A, 5, 's46')
    A(f'''
    v_and_b32 v11, 15, v0
    v_min_u32 v11, 11, v11
    s_mul_i32 s46, s28, 48
    s_add_u32 s46, s46, {FF1}
    v_lshl_add_u32 v7, v11, 2, s46
    s_mul_i32 s46, s28, {384 * 1280}
    s_lshl_b32 s47, s33, 7
    s_add_u32 s46, s46, s47
    v_mul_u32_u24 v11, 10240, v10
    v_lshl_add_u32 v11, v9, 2, v11
    v_add_u32 v2, s46, v11
    v_lshlrev_b32 v11, 5, v9
    v_lshl_add_u32 v4, v10, 4, v11
    s_lshl_b32 s37, s34, 10
    s_add_u32 s37, s37, {GG}
    s_mul_i32 s43, s28, 24576
    s_add_u32 s43, s43, {HH}
    s_lshl_b32 s46, s28, 13
    v_add_u32 v12, s46, v6
    s_lshl_b32 s46, s28, 11
    v_add_u32 v13, s46, v6
    v_mov_b32 v8, 0
    buffer_store_dword v8, v5, s[4:7], 0 offen sc1
    ''')
    srd_fin(A, 8)
    so = SOff(A)

    def load(ks, e, t):
        A(f'buffer_load_dword {v(t)}, v2, s[8:11], {so.at((16 * ks + e) * 1280)}')
    run_loader(A, pair_groups(A, 24, load, lambda ks, T: ('a', 4 * (2 * ks + T))), 8,
               between=lambda n: arrive(A, min(n, 63), 8))
    gwait(A, 8)

    def block(ks):
        for T in range(2):
            D = v(112 + 16 * T, 16)
            A(f'{MF} {D}, {a(4 * (2 * ks + T), 4)}, {v(16 + 4 * ks, 4)}, {D if ks else 0}')

    def epilogue():
        for aa in range(4):
            for T in range(2):
                A(f'ds_write_b128 v12, {v(112 + 16 * T + 4 * aa, 4)} offset:{(2 * aa + T) * 1024}')
        A('s_waitcnt lgkmcnt(0)\ns_barrier')
        for src in range(4):
            for T in range(2):
                A(f'ds_read_b128 {v(144 + 8 * src + 4 * T, 4)}, v13 offset:{src * 8192 + T * 1024}')
        A('v_xor_b32 v12, 0x8000, v12\nv_xor_b32 v13, 0x8000, v13')
        for src in range(1, 4):
            A(f's_waitcnt lgkmcnt({6 - 2 * src})')
            for i in range(0, 8, 2):
                A(f'v_pk_add_f32 {v(144 + i, 2)}, {v(144 + i, 2)}, {v(144 + 8 * src + i, 2)}')
        silu_mul(A, list(range(144, 152)), list(range(152, 160)))
        for c in range(4):
            A(f'v_cvt_pk_bf16_f32 {v(176 + c)}, {v(144 + c)}, {v(148 + c)}')
        A('buffer_store_dwordx4 v[176:179], v4, s[4:7], s37 offen sc1')
        A(f's_add_u32 s37, s37, {GG_S}')
    stream_loop(A, 'Lf2', 24, 16, block, epilogue, HH_S)
```

```python
from asmlib import v, a, s
from layout import *

SM = 'v_smfmac_f32_16x16x64_bf16'
ROWP = [0, 1, 8, 9, 2, 3, 10, 11]
KXB = 131072
QB = KXB + 12288
KB = QB + 3072
VB = 131072
SCALE = 192 ** -0.5
PERS = {153: 8, 154: 9, 155: 10, 156: 11, 157: 12, 158: 13, 159: 14}


def fplace(f):
    if f < 8:
        return ('l', f)
    if f >= 52:
        return ('l', f - 44)
    if f < 40:
        return ('a', 8 * (f - 8))
    return ('v', 160 + 8 * (f - 40))


def fname(f):
    k, i = fplace(f)
    if k == 'l':
        return v(96 + 8 * (i % 8), 8)
    return f'{k}[{i}:{i + 7}]'


def stage_read(A, idx):
    for z in range(2):
        A(f'ds_read_b128 {v(96 + 8 * (idx % 8) + 4 * z, 4)}, v3 offset:{idx * 2048 + z * 1024}')


class FragSink:
    def __init__(self, A):
        self.A, self.k = A, 0

    def quad(self, f, z, srcs):
        A = self.A
        kind, i = fplace(f)
        if kind == 'l':
            t = 144 + 4 * (self.k & 1)
            self.k += 1
            for q, (hi, lo, sel) in enumerate(srcs):
                A(f'v_perm_b32 {v(t + q)}, {hi}, {lo}, {sel}')
            A(f'ds_write_b128 v3, {v(t, 4)} offset:{i * 2048 + z * 1024}')
        else:
            for q, (hi, lo, sel) in enumerate(srcs):
                put(A, (kind, i + 4 * z + q), hi, lo, sel, 152 + (q & 1))


def common_lane(A):
    A('''
    v_lshlrev_b32 v2, 4, v0
    s_lshl_b32 s46, s28, 15
    v_add_u32 v3, s46, v2
    v_and_b32 v9, 15, v0
    v_lshrrev_b32 v10, 4, v0
    v_mov_b32 v4, 0x44444444
    v_mov_b32 v1, 0xeeeeeeee
    v_cmp_lt_u32 vcc, 7, v9
    v_cndmask_b32 v4, v4, v1, vcc
    v_and_b32 v11, 1, v10
    v_lshlrev_b32 v8, 2, v11
    v_lshrrev_b32 v1, 1, v10
    v_add_u32 v11, v8, v1
    v_lshl_add_u32 v8, v1, 4, v8
    v_mov_b32 v12, -1
    v_mov_b32 v13, -1
    v_mov_b32 v14, -1
    v_mov_b32 v15, -1
    ''')


def mem_phase(A, L, ntile, acc, hook):
    def loads(lo):
        for t in range(lo, 10):
            A(f'buffer_load_dwordx4 {v(16 + 4 * t, 4)}, v2, s[4:7], {s(40 + t // 4)} offen offset:{1024 * (t % 4)} sc1')

    def check(t):
        m = 16 + 4 * t
        return [f's_waitcnt vmcnt({9 - t})', f'v_max3_u32 v1, {v(m)}, {v(m + 1)}, {v(m + 2)}',
                f'v_max_u32 v1, v1, {v(m + 3)}', 'v_cmp_eq_u32 vcc, -1, v1']
    loads(0)
    A('s_waitcnt lgkmcnt(0)')
    A(*check(0))
    A(f's_cbranch_vccnz {L}_R0')
    for t in range(10):
        A(f'{L}_G{t}:')
        hook('pre', t, None)
        ck = check(t + 1) if t < 9 else []
        for j in range(ntile):
            f = ntile * t + j
            hook('mf', t, f)
            A(f'{SM} {v(acc + 4 * j, 4)}, {v(16 + 4 * t, 4)}, {fname(f)}, v4')
            if f < 8:
                stage_read(A, f + 8)
            if ck and j == ntile - 3:
                A(*ck[:2])
            if ck and j == ntile - 2:
                A(*ck[2:])
        if t < 9:
            A(f's_cbranch_vccnz {L}_R{t + 1}')

    def ool():
        for t in range(10):
            A(f'{L}_R{t}:')
            A(f's_cmp_eq_u32 s25, 0\ns_cbranch_scc1 {L}_G{t}\ns_sub_u32 s25, s25, 1')
            loads(t)
            A(*check(t))
            A(f's_cbranch_vccnz {L}_R{t}\ns_branch {L}_G{t}')
    return ool


def half_sum(A, D):
    A(f'v_permlane32_swap_b32 {v(D)}, {v(D + 1)}')
    A(f'v_permlane32_swap_b32 {v(D + 2)}, {v(D + 3)}')


def half_add(A, D):
    A(f'v_add_f32 {v(D)}, {v(D)}, {v(D + 1)}')
    A(f'v_add_f32 {v(D + 2)}, {v(D + 2)}, {v(D + 3)}')


def scores_softmax(A, Q, D, masked, soff):
    KXR = {(0, 0): 80, (1, 0): 88, (0, 1): 16, (1, 1): 24, (0, 2): 32, (1, 2): 40}
    for kb in range(3):
        if not masked:
            A(f's_waitcnt lgkmcnt({8 - kb})')
        for T in range(2):
            A(f'{SM} {v(D + 4 + 4 * T, 4)}, {v(Q + 4 * kb, 4)}, {v(KXR[T, kb], 8)}, v4')
    for kb in range(3):
        A(f's_waitcnt lgkmcnt({4 - 2 * kb})')
        A(f'{SM} {v(D, 4)}, {v(Q + 4 * kb, 4)}, {v(108 + 8 * kb, 8)}, v4')
    Dm, D0, D1 = D, D + 4, D + 8
    for d in (D0, D1, Dm):
        half_sum(A, d)
    for d in (D0, D1, Dm):
        half_add(A, d)
    if masked:
        for i, r in enumerate((D0, D1, D0 + 2, D1 + 2)):
            A(f'v_cndmask_b32_e64 {v(r)}, v7, {v(r)}, {s(60 + 2 * i, 2)}')
    A(f'v_max3_f32 v144, {v(Dm)}, {v(D0)}, {v(D1)}')
    A(f'v_max3_f32 v145, {v(Dm + 2)}, {v(D0 + 2)}, {v(D1 + 2)}')
    for k in (8, 4, 2, 1):
        for t in (144, 145):
            A(f'v_max_f32_dpp {v(t)}, {v(t)}, {v(t)} row_ror:{k} row_mask:0xf bank_mask:0xf')
    A('v_mul_f32 v144, s58, v144\nv_mul_f32 v145, s58, v145')
    for o, t in ((0, 144), (2, 145)):
        for d in (D0, D1, Dm):
            A(f'v_fma_f32 {v(d + o)}, {v(d + o)}, s58, -{v(t)}')
    for o in (0, 2):
        for d in (D0, D1, Dm):
            A(f'v_exp_f32 {v(d + o)}, {v(d + o)}')
    for o, t in ((0, 146), (2, 147)):
        A(f'v_add_f32 {v(t)}, {v(D0 + o)}, {v(D1 + o)}')
    for o, t in ((0, 146), (2, 147)):
        A(f'v_fma_f32 {v(t)}, {v(Dm + o)}, 0.5, {v(t)}')
    for k in (8, 4, 2, 1):
        for t in (146, 147):
            A(f'v_add_f32_dpp {v(t)}, {v(t)}, {v(t)} row_ror:{k} row_mask:0xf bank_mask:0xf')
    A('v_rcp_f32 v146, v146\nv_rcp_f32 v147, v147')
    for o, t in ((0, 146), (2, 147)):
        for d in (D0, D1, Dm):
            A(f'v_mul_f32 {v(d + o)}, {v(d + o)}, {v(t)}')
    A(f'v_cvt_pk_bf16_f32 v148, {v(D0)}, {v(D1)}')
    A(f'v_cvt_pk_bf16_f32 v149, {v(D0 + 2)}, {v(D1 + 2)}')
    A(f'v_cndmask_b32_e64 v150, {v(Dm)}, {v(Dm + 2)}, s[68:69]')
    A(f'buffer_store_dword v148, v9, s[4:7], {soff} offen sc1')
    A(f'v_cvt_pk_bf16_f32 v150, v150, v150')
    A(f'buffer_store_dword v149, v9, s[4:7], {soff} offen offset:32 sc1')
    A(f'buffer_store_short v150, v10, s[4:7], {soff} offen sc1')


def role_qk(A):
    A('Lqk:')
    A('''
    s_load_dwordx2 s[8:9], s[0:1], 16
    s_load_dwordx2 s[12:13], s[0:1], 24
    s_mov_b32 s10, 7864320
    s_mov_b32 s11, 0x20000
    s_lshl_b32 s33, s26, 2
    s_add_u32 s33, s33, s27
    ''')
    common_lane(A)
    A(f'''
    s_and_b32 s46, s28, 1
    s_mul_i32 s47, s46, 192
    s_mul_i32 s48, s33, 384
    s_add_u32 s47, s47, s48
    v_mul_u32_u24 v6, 12288, v8
    v_mul_u32_u24 v1, 12, v9
    v_add3_u32 v6, v6, v1, s47
    s_mul_i32 s48, s33, 640
    v_add_u32 v5, s48, v2
    v_mov_b32 v1, {OOB}
    v_cmp_gt_u32 vcc, 40, v0
    s_cmp_eq_u32 s28, 1
    s_cselect_b64 vcc, vcc, 0
    v_cndmask_b32 v5, v1, v5, vcc
    s_mov_b32 s46, {PP}
    s_mov_b32 s47, {PP + PP_S}
    buffer_store_dwordx4 v[12:15], v5, s[4:7], s46 offen sc1
    buffer_store_dwordx4 v[12:15], v5, s[4:7], s47 offen sc1
    s_waitcnt lgkmcnt(0)
    s_cmp_ge_u32 s28, 2
    s_cselect_b32 s8, s12, s8
    s_cselect_b32 s9, s13, s9
    s_and_b32 s9, s9, 0xffff
    ''')
    so = SOff(A)
    sink = FragSink(A)
    groups = []
    for t in range(10):
        for z in range(2):
            def issue(slot, t=t, z=z):
                for e in range(8):
                    A(f'buffer_load_dwordx3 {v(16 + 32 * slot + 4 * e, 3)}, v6, s[8:11], {so.at((64 * t + 32 * z + ROWP[e]) * 12288)}')

            def post(slot, t=t, z=z):
                b = 16 + 32 * slot
                for j in range(6):
                    sink.quad(6 * t + j, z, [(v(b + 8 * q + 4 + j // 2), v(b + 8 * q + j // 2), ('s29', 's30')[j % 2]) for q in range(4)])
            groups.append((8, issue, post))
    run_loader(A, groups, 4, between=lambda n: arrive(A, n, 7))
    lq, ld = A.lab('xq'), A.lab('xd')
    A(f'''
    v_mov_b32 v6, v5
    v_add_u32 v5, {KXB}, v2
    v_mov_b32 v7, {f32(-3.0e38)}
    s_and_b32 s46, s28, 1
    s_mul_i32 s46, s46, 48
    v_mul_u32_u24 v16, 3, v9
    v_add_u32 v16, s46, v16
    s_cmp_lt_u32 s28, 2
    s_cbranch_scc1 {lq}
    ''')
    for m in range(3):
        A(f'''
        v_add_u32 v17, {m}, v16
        v_lshrrev_b32 v18, 2, v17
        v_and_b32 v17, 3, v17
        v_lshlrev_b32 v18, 7, v18
        v_lshl_add_u32 v17, v17, 2, v18
        v_lshl_add_u32 v17, v11, 4, v17
        v_add_u32 {v(156 + m)}, {KB}, v17
        ''')
    A(f's_branch {ld}\n{lq}:')
    for m in range(3):
        A(f'''
        v_add_u32 v17, {m}, v16
        v_lshrrev_b32 v18, 3, v17
        v_lshlrev_b32 v18, 8, v18
        v_and_b32 v19, 1, v17
        v_lshl_add_u32 v18, v19, 7, v18
        v_bfe_u32 v19, v17, 1, 2
        v_lshl_add_u32 v18, v19, 2, v18
        v_lshl_add_u32 v18, v11, 4, v18
        v_add_u32 {v(156 + m)}, {QB}, v18
        ''')
    A(f'''
    {ld}:
    v_and_b32 v17, 7, v9
    v_lshlrev_b32 v18, 7, v10
    v_lshl_add_u32 v18, v17, 4, v18
    v_add_u32 v159, {KB}, v18
    s_mul_i32 s48, s33, 640
    v_lshrrev_b32 v18, 3, v9
    v_lshlrev_b32 v19, 8, v18
    v_and_b32 v20, 1, v9
    v_lshl_add_u32 v19, v20, 7, v19
    v_lshl_add_u32 v19, v11, 4, v19
    v_bfe_u32 v21, v9, 1, 2
    v_lshl_add_u32 v19, v21, 2, v19
    v_add_u32 v154, s48, v19
    v_lshl_add_u32 v18, v18, 1, v11
    v_bfe_u32 v19, v9, 1, 1
    v_lshlrev_b32 v19, 6, v19
    v_lshl_add_u32 v19, v18, 3, v19
    v_bfe_u32 v21, v9, 2, 1
    v_lshl_add_u32 v20, v21, 1, v20
    v_lshl_add_u32 v19, v20, 1, v19
    s_add_u32 s48, s48, 512
    v_add_u32 v155, s48, v19
    v_and_b32 v17, 7, v0
    v_min_u32 v17, 5, v17
    s_lshl_b32 s46, s33, 7
    s_add_u32 s46, s46, {FG}
    v_lshl_add_u32 v153, v17, 2, s46
    s_lshl_b32 s46, s28, 3
    v_add_u32 v17, s46, v11
    v_add_u32 v18, 2, v17
    v_lshlrev_b32 v19, 1, v9
    v_add_u32 v20, 1, v19
    v_cmp_le_u32_e64 s[60:61], v19, v17
    v_cmp_le_u32_e64 s[62:63], v20, v17
    v_cmp_le_u32_e64 s[64:65], v19, v18
    v_cmp_le_u32_e64 s[66:67], v20, v18
    v_cmp_lt_u32_e64 s[68:69], 7, v9
    s_mov_b32 s58, {f32(SCALE * LOG2E)}
    s_mov_b32 s40, {MM}
    s_mov_b32 s43, {PP}
    s_mul_i32 s46, s33, 12288
    s_mul_i32 s47, s28, 3072
    s_add_u32 s44, s46, s47
    s_add_u32 s44, s44, {QX}
    s_sub_u32 s47, s28, 1
    s_lshl_b32 s47, s47, 12
    s_add_u32 s45, s46, s47
    s_add_u32 s45, s45, {KX}
    s_add_u32 s52, s47, {KXB}
    s_mul_i32 s49, s28, 20480
    s_add_u32 s49, s49, {PX}
    ''')
    for k, r in PERS.items():
        A(f'v_mov_b32 {v(r)}, {v(k)}')
    gwait(A, 17)

    def dma():
        A('s_mov_b32 m0, s52')
        for i in range(4):
            A(f'buffer_load_dwordx4 v2, s[4:7], s45 offen offset:{1024 * i} sc1 lds')
        A(f's_add_u32 s45, s45, {QKV_S}')
    l = A.lab('k0')
    A(f's_cmp_eq_u32 s28, 0\ns_cbranch_scc1 {l}\ns_mov_b32 s50, 1')
    poll_block(A, 17, PERS[153], 's50')
    dma()
    A(f'{l}:\ns_waitcnt vmcnt(0)\ns_barrier')
    A('Lqk_loop:')
    for i in range(8):
        stage_read(A, i)
    for T in range(2):
        for z in range(2):
            A(f'ds_read_b128 {v(80 + 8 * T + 4 * z, 4)}, v5 offset:{T * 6144 + z * 1024}')
    for r in range(56, 80):
        A(f'v_mov_b32 {v(r)}, 0')
    A('s_add_u32 s41, s40, 4096\ns_add_u32 s42, s40, 8192')

    def hook(kind, t, f):
        if kind == 'pre' and t == 8:
            for kb in (1, 2):
                for T in range(2):
                    for z in range(2):
                        A(f'ds_read_b128 {v(16 * kb + 8 * T + 4 * z, 4)}, v5 offset:{T * 6144 + kb * 2048 + z * 1024}')
        if kind == 'mf' and f == 52:
            A('s_waitcnt lgkmcnt(8)')
    ool = mem_phase(A, 'Lqk', 6, 56, hook)
    for j in range(6):
        half_sum(A, 56 + 4 * j)
    for j in range(6):
        half_add(A, 56 + 4 * j)
    for m in range(3):
        d = 56 + 8 * m
        A(f'v_cvt_pk_bf16_f32 {v(d + 1)}, {v(d)}, {v(d + 4)}')
        A(f'v_cvt_pk_bf16_f32 {v(d + 3)}, {v(d + 2)}, {v(d + 6)}')
        A(f'ds_write_b32 {v(PERS[156 + m])}, {v(d + 1)}')
        A(f'ds_write_b32 {v(PERS[156 + m])}, {v(d + 3)} offset:32')
    for r in range(132, 144):
        A(f'v_mov_b32 {v(r)}, 0')
    A('s_waitcnt lgkmcnt(0)\ns_barrier')
    lo, lj = A.lab('oth'), A.lab('join')
    for kb in range(3):
        A(f'ds_read_b128 {v(96 + 4 * kb, 4)}, v5 offset:{QB - KXB + kb * 1024}')
    for kb in range(3):
        for z in range(2):
            A(f'ds_read_b128 {v(108 + 8 * kb + 4 * z, 4)}, {v(PERS[159])} offset:{kb * 1024 + z * 512}')
    for kb in range(3):
        A(f'buffer_load_dwordx4 {v(56 + 4 * kb, 4)}, v2, s[4:7], s44 offen offset:{1024 * kb} sc1')
    A(f's_cmp_lg_u32 s28, 0\ns_cbranch_scc1 {lo}')
    scores_softmax(A, 96, 132, False, 's43')
    A(f's_waitcnt vmcnt(3)\ns_branch {lj}\n{lo}:')
    A(f's_add_u32 s46, s43, {2 * PP_S}')
    for r in range(144, 148):
        A(f'v_mov_b32 {v(r)}, -1')
    A('buffer_store_dwordx4 v[144:147], v6, s[4:7], s46 offen sc1')
    A('s_add_u32 s50, s24, 2\ns_min_u32 s50, s50, 64')
    poll_block(A, 1, PERS[153], 's50')
    dma()
    A(f'{lj}:')
    for r in range(68, 80):
        A(f'v_mov_b32 {v(r)}, 0')
    scores_softmax(A, 56, 68, True, 's49')
    A(f'''
    s_add_u32 s40, s40, {MM_S}
    s_add_u32 s43, s43, {PP_S}
    s_add_u32 s44, s44, {QKV_S}
    s_add_u32 s49, s49, {PX_S}
    s_add_u32 s24, s24, 1
    s_waitcnt vmcnt(3)
    s_barrier
    s_cmp_lt_u32 s24, 64
    s_cbranch_scc1 Lqk_loop
    s_waitcnt vmcnt(0)
    s_barrier
    v_mov_b32 v144, 0
    v_mov_b32 v145, 0
    v_mov_b32 v146, 0
    v_mov_b32 v147, 0
    buffer_store_dwordx4 v[144:147], v6, s[4:7], s43 offen sc1
    s_endpgm
    ''')
    ool()


def role_vum(A):
    A('Lvum:')
    srd(A, 8, 32, 7864320)
    srd(A, 12, 40, 7864320)
    A('''
    s_lshl_b32 s33, s26, 2
    s_add_u32 s33, s33, s27
    s_sub_u32 s33, s33, 4
    ''')
    common_lane(A)
    A(f'''
    s_mul_i32 s46, s28, 48
    v_mul_u32_u24 v16, 3, v9
    v_add_u32 v16, s46, v16
    v_lshlrev_b32 v17, 1, v16
    v_and_b32 v17, -4, v17
    s_mul_i32 s47, s33, 384
    v_mul_u32_u24 v6, 12288, v8
    v_add3_u32 v6, v6, v17, s47
    s_mul_i32 s47, s33, 245760
    s_mul_i32 s48, s28, 320
    s_add_u32 s47, s47, s48
    v_mul_u32_u24 v7, 1280, v8
    v_lshlrev_b32 v17, 2, v9
    v_add3_u32 v7, v7, v17, s47
    v_lshrrev_b32 v17, 3, v9
    v_lshlrev_b32 v17, 13, v17
    v_and_b32 v18, 7, v9
    v_lshl_add_u32 v17, v18, 4, v17
    v_lshrrev_b32 v18, 1, v10
    v_lshl_add_u32 v17, v18, 7, v17
    v_and_b32 v18, 1, v10
    v_lshl_add_u32 v5, v18, 3, v17
    s_lshl_b32 s43, s33, 8
    s_mul_i32 s46, s28, {10 * 8192}
    s_add_u32 s43, s43, s46
    s_add_u32 s43, s43, {UM}
    ''')
    for k in range(2):
        for pr in range(5):
            A(f's_add_u32 s46, s43, {k * UM_S + pr * 16384}')
            A('buffer_store_dwordx2 v[12:13], v5, s[4:7], s46 offen sc1')
    for j in range(3):
        A(f'''
        v_add_u32 v17, {j}, v16
        v_lshrrev_b32 v18, 3, v17
        v_lshlrev_b32 v18, 7, v18
        v_and_b32 v17, 7, v17
        v_lshl_add_u32 v17, v17, 1, v18
        v_lshl_add_u32 v17, v11, 4, v17
        v_add_u32 {v(156 + j)}, {VB}, v17
        ''')
    A('''
    v_and_b32 v17, 1, v9
    v_cmp_eq_u32_e64 s[60:61], 1, v17
    v_mov_b32 v0, s29
    v_mov_b32 v8, s30
    v_cndmask_b32_e64 v17, v0, v8, s[60:61]
    v_cndmask_b32_e64 v8, v8, v0, s[60:61]
    v_mov_b32 v0, v17
    ''')
    srd_fin(A, 8, 12)
    so = SOff(A)
    sink = FragSink(A)
    groups = []
    for t in range(10):
        for z in range(2):
            def issue(slot, t=t, z=z):
                for e in range(8):
                    A(f'buffer_load_dwordx2 {v(16 + 16 * slot + 2 * e, 2)}, v6, s[8:11], {so.at((64 * t + 32 * z + ROWP[e]) * 12288)}')

            def post(slot, t=t, z=z):
                b = 16 + 16 * slot
                sink.quad(3 * t, z, [(v(b + 4 * q + 2), v(b + 4 * q), 'v0') for q in range(4)])
                sink.quad(3 * t + 2, z, [(v(b + 4 * q + 3), v(b + 4 * q + 1), 'v0') for q in range(4)])
                for e in range(8):
                    A(f'v_cndmask_b32_e64 {v(b + 2 * e)}, {v(b + 2 * e)}, {v(b + 2 * e + 1)}, s[60:61]')
                sink.quad(3 * t + 1, z, [(v(b + 4 * q + 2), v(b + 4 * q), 'v8') for q in range(4)])
            groups.append((8, issue, post))
    for pr in range(5):
        for kb in range(3):
            for z in range(2):
                def issue(slot, pr=pr, kb=kb, z=z):
                    for e in range(8):
                        A(f'buffer_load_dword {v(16 + 16 * slot + e)}, v7, s[12:15], {so.at((64 * kb + 32 * z + ROWP[e]) * 1280 + pr * 64)}')

                def post(slot, pr=pr, kb=kb, z=z):
                    b = 16 + 16 * slot
                    for T in range(2):
                        sink.quad(30 + 6 * pr + 2 * kb + T, z, [(v(b + 2 * q + 1), v(b + 2 * q), ('s29', 's30')[T]) for q in range(4)])
                groups.append((8, issue, post))
    run_loader(A, groups, 8, between=lambda n: arrive(A, min(n, 63), 1))
    A(f'''
    v_mov_b32 v8, -1
    v_mov_b32 v9, -1
    v_mov_b32 v13, v156
    v_mov_b32 v14, v157
    v_mov_b32 v15, v158
    v_add_u32 v6, {VB}, v2
    s_mov_b32 s40, {MM}
    ''')
    gwait(A, 17)
    A('Lvum_loop:')
    for i in range(8):
        stage_read(A, i)
    for r in range(56, 68):
        A(f'v_mov_b32 {v(r)}, 0')
    A('s_add_u32 s41, s40, 4096\ns_add_u32 s42, s40, 8192')
    ool = mem_phase(A, 'Lvum', 3, 56, lambda *x: None)
    for j in range(3):
        half_sum(A, 56 + 4 * j)
    for j in range(3):
        half_add(A, 56 + 4 * j)
    for j in range(3):
        d = 56 + 4 * j
        A(f'v_cvt_pk_bf16_f32 {v(d + 1)}, {v(d)}, {v(d + 2)}')
        A(f'ds_write_b16 {v(13 + j)}, {v(d + 1)}')
        A(f'ds_write_b16_d16_hi {v(13 + j)}, {v(d + 1)} offset:32')
    for r in range(16, 36):
        A(f'v_mov_b32 {v(r)}, 0')
    A('s_waitcnt lgkmcnt(0)\ns_barrier')
    for kb in range(3):
        A(f'ds_read_b128 {v(68 + 4 * kb, 4)}, v6 offset:{kb * 1024}')
    for r in range(36, 56):
        A(f'v_mov_b32 {v(r)}, 0')

    def red(pr):
        d0, d1 = 16 + 8 * pr, 20 + 8 * pr
        o = [f'v_permlane32_swap_b32 {v(d0 + r)}, {v(d1 + r)}' for r in range(4)]
        o += [f'v_pk_add_f32 {v(d0 + r, 2)}, {v(d0 + r, 2)}, {v(d1 + r, 2)}' for r in (0, 2)]
        o += [f'v_cvt_pk_bf16_f32 {v(d1)}, {v(d0)}, {v(d0 + 1)}', f'v_cvt_pk_bf16_f32 {v(d1 + 1)}, {v(d0 + 2)}, {v(d0 + 3)}']
        o += [f's_add_u32 s46, s43, {pr * 16384}\nbuffer_store_dwordx2 {v(d1, 2)}, v5, s[4:7], s46 offen sc1']
        return o
    for pr in range(5):
        pend = red(pr - 1) if pr else []
        for kb in range(3):
            if pr == 0:
                A(f's_waitcnt lgkmcnt({2 - kb})')
            for T in range(2):
                A(f'{SM} {v(16 + 8 * pr + 4 * T, 4)}, {v(68 + 4 * kb, 4)}, {fname(30 + 6 * pr + 2 * kb + T)}, v4')
                if 2 * kb + T >= 2:
                    for _ in range(3):
                        if pend:
                            A(pend.pop(0))
        assert not pend
    A(*red(4))
    for pr in range(5):
        A(f's_add_u32 s46, s43, {2 * UM_S + pr * 16384}')
        A('buffer_store_dwordx2 v[8:9], v5, s[4:7], s46 offen sc1')
    A(f'''
    s_add_u32 s40, s40, {MM_S}
    s_add_u32 s43, s43, {UM_S}
    s_add_u32 s24, s24, 1
    s_cmp_lt_u32 s24, 64
    s_cbranch_scc1 Lvum_loop
    s_endpgm
    ''')
    ool()


def pack_rows(A, D, t):
    half_sum(A, D)
    half_add(A, D)
    A(f'v_mov_b32 {v(t)}, {v(D)}')
    A(f'v_mov_b32_dpp {v(D)}, {v(D + 2)} row_ror:8 row_mask:0xf bank_mask:0xc')
    A(f'v_mov_b32_dpp {v(D + 2)}, {v(t)} row_ror:8 row_mask:0xf bank_mask:0x3')


def bf16_round(A, r):
    A(f'v_cvt_pk_bf16_f32 {v(r)}, {v(r)}, {v(r)}')
    A(f'v_and_b32 {v(r)}, 0xffff0000, {v(r)}')


def oct_sum(A, r):
    A(f'v_add_f32_dpp {v(r)}, {v(r)}, {v(r)} quad_perm:[1,0,3,2] row_mask:0xf bank_mask:0xf')
    A(f'v_add_f32_dpp {v(r)}, {v(r)}, {v(r)} quad_perm:[2,3,0,1] row_mask:0xf bank_mask:0xf')
    A(f'v_add_f32_dpp {v(r)}, {v(r)}, {v(r)} row_half_mirror row_mask:0xf bank_mask:0xf')


def layernorm(A):
    A('s_mul_i32 s46, s34, 40960')
    for m in range(10):
        A(f'buffer_load_dwordx4 {v(20 + 4 * m, 4)}, v16, s[8:11], s46 offen offset:{128 * m}')
    for m in range(10):
        A(f's_waitcnt vmcnt({9 - m})')
        for q in range(4):
            A(f'v_lshlrev_b32 {v(64 + 8 * m + 2 * q)}, 16, {v(20 + 4 * m + q)}')
            A(f'v_and_b32 {v(65 + 8 * m + 2 * q)}, 0xffff0000, {v(20 + 4 * m + q)}')
    A('v_pk_add_f32 v[18:19], v[64:65], v[66:67]')
    for k in range(2, 40):
        A(f'v_pk_add_f32 v[18:19], v[18:19], {v(64 + 2 * k, 2)}')
    A('v_add_f32 v18, v18, v19')
    oct_sum(A, 18)
    A(f'v_mul_f32 v18, {f32(1 / 640)}, v18')
    A('v_mov_b32 v60, 0\nv_mov_b32 v61, 0')
    for k in range(80):
        A(f'v_sub_f32 {v(62 + (k & 1))}, {v(64 + k)}, v18')
        A(f'v_fmac_f32 {v(60 + (k & 1))}, {v(62 + (k & 1))}, {v(62 + (k & 1))}')
    A('v_add_f32 v60, v60, v61')
    oct_sum(A, 60)
    A(f'v_mul_f32 v60, {f32(1 / 640)}, v60')
    bf16_round(A, 18)
    bf16_round(A, 60)
    A(f'v_add_f32 v60, {f32(1e-5)}, v60')
    bf16_round(A, 60)
    A('v_sqrt_f32 v60, v60')
    bf16_round(A, 60)
    A('v_rcp_f32 v60, v60')
    A(f's_add_u32 s46, s46, {XN}')
    for m in range(10):
        for q in range(4):
            r = 64 + 8 * m + 2 * q
            A(f'v_sub_f32 {v(r)}, {v(r)}, v18\nv_sub_f32 {v(r + 1)}, {v(r + 1)}, v18')
            A(f'v_cvt_pk_bf16_f32 {v(r)}, {v(r)}, {v(r + 1)}')
            A(f'v_and_b32 {v(r + 1)}, 0xffff0000, {v(r)}\nv_lshlrev_b32 {v(r)}, 16, {v(r)}')
            A(f'v_mul_f32 {v(r)}, {v(r)}, v60\nv_mul_f32 {v(r + 1)}, {v(r + 1)}, v60')
            A(f'v_cvt_pk_bf16_f32 {v(20 + 4 * m + q)}, {v(r)}, {v(r + 1)}')
        A(f'buffer_store_dwordx4 {v(20 + 4 * m, 4)}, v17, s[4:7], s46 offen sc1')
        A('s_add_u32 s46, s46, 4096')


def p_loads(A, px, pm, sreg, ops):
    for b in range(4):
        for u in range(2):
            A(f'buffer_load_dwordx2 {v(pm + 4 * b + 2 * u, 2)}, v6, s[4:7], {s(sreg + b)} offen offset:{640 * u} sc1')
    k = 0
    for b in range(8):
        for op in ops:
            A(f'buffer_load_dwordx4 {v(px + 4 * k, 4)}, v5, s[4:7], {s(sreg + b // 2)} offen offset:{(b % 2) * 2560 + op * 256} sc1')
            k += 1


def role_pu(A):
    A('Lpu:')
    srd(A, 8, 0, 2621440)
    srd(A, 12, 88, 2621440)
    srd(A, 16, 8, 10240)
    A('''
    s_mul_i32 s33, s26, 5
    s_add_u32 s33, s33, s27
    s_sub_u32 s33, s33, 8
    ''')
    common_lane(A)
    A(f'''
    v_lshrrev_b32 v18, 3, v0
    s_lshl_b32 s46, s28, 3
    v_add_u32 v18, s46, v18
    v_and_b32 v19, 7, v0
    v_mul_u32_u24 v16, 1280, v18
    v_lshl_add_u32 v16, v19, 4, v16
    v_lshlrev_b32 v17, 4, v18
    v_and_b32 v20, 1, v19
    v_lshl_add_u32 v17, v20, 9, v17
    v_lshrrev_b32 v20, 1, v19
    v_lshl_add_u32 v17, v20, 10, v17
    v_mul_u32_u24 v5, 640, v10
    v_lshl_add_u32 v5, v9, 4, v5
    v_mul_u32_u24 v6, 1280, v10
    v_lshl_add_u32 v6, v9, 3, v6
    v_add_u32 v6, 512, v6
    v_lshrrev_b32 v20, 3, v9
    v_lshl_add_u32 v11, v20, 1, v11
    v_and_b32 v8, 7, v9
    v_lshrrev_b32 v20, 1, v10
    v_lshlrev_b32 v20, 10, v20
    v_and_b32 v21, 1, v10
    v_lshl_add_u32 v20, v21, 8, v20
    v_lshl_add_u32 v3, v9, 4, v20
    s_mov_b32 s34, s33
    ''')
    srd_fin(A, 8, 12, 16)
    l = A.lab('m0')
    A(f'''
    s_cmp_lg_u32 s28, 0
    s_cbranch_scc1 {l}
    v_and_b32 v20, 7, v0
    v_mul_u32_u24 v20, 1280, v20
    v_lshrrev_b32 v21, 3, v0
    v_lshl_add_u32 v20, v21, 4, v20
    s_lshl_b32 s46, s33, 5
    v_add_u32 v20, s46, v20
    s_lshl_b32 s46, s33, 8
    v_add_u32 v21, s46, v2
    v_mov_b32 v1, {OOB}
    v_cmp_gt_u32 vcc, 16, v0
    v_cndmask_b32 v20, v1, v20, vcc
    v_cndmask_b32 v21, v1, v21, vcc
    buffer_load_dwordx4 v[24:27], v20, s[16:19], 0 offen
    s_mov_b32 s46, {MM + MM_S}
    s_mov_b32 s47, {MM + 2 * MM_S}
    s_mov_b32 s48, {MM}
    buffer_store_dwordx4 v[12:15], v21, s[4:7], s46 offen sc1
    buffer_store_dwordx4 v[12:15], v21, s[4:7], s47 offen sc1
    s_waitcnt vmcnt(2)
    buffer_store_dwordx4 v[24:27], v21, s[4:7], s48 offen sc1
    {l}:
    Lpu_ln:
    ''')
    layernorm(A)
    A('''
    s_add_u32 s34, s34, 40
    s_cmp_lt_u32 s34, 64
    s_cbranch_scc1 Lpu_ln
    ''')
    arrive(A, 0, 1)
    gwait(A, 1)
    A('s_cmp_lg_u32 s28, 0\ns_cbranch_scc1 Lpux')
    A(f'''
    v_lshrrev_b32 v16, 2, v8
    v_lshlrev_b32 v16, 7, v16
    v_lshl_add_u32 v16, v11, 4, v16
    v_and_b32 v17, 3, v9
    v_lshl_add_u32 v16, v17, 2, v16
    s_lshl_b32 s46, s33, 8
    v_add_u32 v7, s46, v16
    v_and_b32 v16, 31, v0
    v_mul_u32_u24 v0, 640, v16
    v_mov_b32 v130, -1
    v_mov_b32 v132, v3
    v_add_u32 v133, 32768, v2
    s_mov_b32 s40, {PP}
    s_lshl_b32 s44, s33, 13
    s_add_u32 s44, s44, {UM}
    s_mov_b32 s46, {MM + MM_S}
    s_mov_b32 s48, 0
    s_barrier
    Lpu0_loop:
    v_add_u32 v3, s48, v132
    v_add_u32 v131, s48, v133
    ''')
    for b in range(8):
        for op in range(2):
            for z in range(2):
                A(f'ds_read_b128 {a(8 * (2 * b + op) + 4 * z, 4)}, v3 offset:{(4 * b + 2 * z) * 1024 + op * 512}')
    A(f'''
    s_add_u32 s41, s40, 5120
    s_add_u32 s42, s40, 10240
    s_add_u32 s43, s40, 15360
    s_add_u32 s45, s44, 4096
    s_add_u32 s47, s46, {2 * MM_S}
    Lpu0_gate:
    buffer_load_dword v1, v0, s[4:7], s40 offen offset:512 sc1
    s_waitcnt vmcnt(0)
    v_and_b32 v1, 0x80008000, v1
    v_cmp_ne_u32 vcc, 0, v1
    s_cbranch_vccz Lpu0_try
    ''')
    retry(A, 'Lpu0_gate', 'Lpu0_try')
    A('Lpu0_try:')
    for k in range(8):
        A(f'buffer_load_dwordx4 {v(96 + 4 * k, 4)}, v2, s[4:7], {s(44 + k // 4)} offen offset:{1024 * (k % 4)} sc1')
    p_loads(A, 16, 80, 40, (0, 1))
    for r in range(8, 16):
        A(f'v_mov_b32 {v(r)}, 0')
    A('v_mov_b32 v128, 0\nv_mov_b32 v129, 0\ns_waitcnt lgkmcnt(0)')
    for k in range(20):
        if k < 4:
            Af, Bf, cnt = 80 + 4 * k, v(96 + 8 * k, 8), 22 - 2 * k
        else:
            Af, Bf, cnt = 16 + 4 * (k - 4), a(8 * (k - 4), 8), 19 - k
        A(f's_waitcnt vmcnt({cnt})')
        A(f'{SM} {v(8 + 4 * (k & 1), 4)}, {v(Af, 4)}, {Bf}, v4')
        A(f'v_or3_b32 v128, v128, {v(Af)}, {v(Af + 1)}')
        A(f'v_or3_b32 v128, v128, {v(Af + 2)}, {v(Af + 3)}')
        if 4 <= k < 12:
            u = 96 + 4 * (k - 4)
            A(f'v_max3_u32 v129, v129, {v(u)}, {v(u + 2)}')
        if k == 12:
            A('v_cmp_eq_u32_e64 s[50:51], -1, v129')
    A('''
    v_and_b32 v128, 0x80008000, v128
    v_cmp_ne_u32 vcc, 0, v128
    s_or_b64 vcc, vcc, s[50:51]
    s_cbranch_scc1 Lpu0_retry
    Lpu0_ok:
    v_pk_add_f32 v[8:9], v[8:9], v[12:13]
    v_pk_add_f32 v[10:11], v[10:11], v[14:15]
    ''')
    pack_rows(A, 8, 12)
    A('''
    v_cvt_pk_bf16_f32 v8, v8, v10
    buffer_store_dword v8, v7, s[4:7], s46 offen sc1
    buffer_store_dword v130, v7, s[4:7], s47 offen sc1
    ''')
    for k in range(8):
        A(f'ds_write_b128 v131, {v(96 + 4 * k, 4)} offset:{1024 * k}')
    A(f'''
    s_add_u32 s40, s40, {PP_S}
    s_add_u32 s44, s44, {UM_S}
    s_add_u32 s46, s46, {MM_S}
    s_add_u32 s48, s48, 40960
    s_cmp_eq_u32 s48, 163840
    s_cselect_b32 s48, 0, s48
    s_add_u32 s24, s24, 1
    s_waitcnt lgkmcnt(0)
    s_barrier
    s_cmp_lt_u32 s24, 64
    s_cbranch_scc1 Lpu0_loop
    Lpu0_fin:
    buffer_load_dword v1, v0, s[4:7], s40 offen offset:512 sc1
    s_waitcnt vmcnt(0)
    v_and_b32 v1, 0x80008000, v1
    v_cmp_ne_u32 vcc, 0, v1
    s_cbranch_vccz Lpu0_end
    ''')
    retry(A, 'Lpu0_fin', 'Lpu0_end')
    A('Lpu0_end:\ns_barrier\ns_endpgm\nLpu0_retry:')
    retry(A, 'Lpu0_try', 'Lpu0_ok')
    A(f'''
    Lpux:
    s_lshr_b32 s46, s33, 3
    s_sub_u32 s47, s33, 32
    s_lshr_b32 s47, s47, 2
    s_lshl_b32 s47, s47, 1
    s_add_u32 s48, s47, 1
    s_cmp_lt_u32 s33, 32
    s_cselect_b32 s47, s46, s47
    s_cselect_b32 s48, s46, s48
    s_lshl_b32 s47, s47, 7
    s_lshl_b32 s48, s48, 7
    v_mov_b32 v16, s47
    v_mov_b32 v17, s48
    v_cmp_gt_u32 vcc, 32, v0
    v_cndmask_b32 v16, v17, v16, vcc
    v_and_b32 v17, 31, v0
    v_lshl_add_u32 v16, v17, 2, v16
    v_add_u32 v160, {FU}, v16
    s_lshl_b32 s46, s33, 2
    s_add_u32 s46, s46, {FF2}
    v_mov_b32 v161, s46
    v_mul_u32_u24 v7, 1280, v11
    v_lshl_add_u32 v7, v8, 2, v7
    s_lshl_b32 s46, s33, 5
    v_add_u32 v7, s46, v7
    v_lshlrev_b32 v162, 5, v11
    v_lshl_add_u32 v162, v8, 2, v162
    v_mov_b32 v163, v3
    v_add_u32 v164, 32768, v2
    s_cmp_eq_u32 s28, 1
    s_cselect_b32 s35, 0, s28
    s_mul_i32 s40, s35, 20480
    s_add_u32 s40, s40, {PX}
    s_mul_i32 s49, s35, 10240
    s_lshl_b32 s51, s35, 8
    s_lshl_b32 s46, s33, 10
    s_add_u32 s51, s51, s46
    s_add_u32 s51, s51, {GG}
    s_cmp_eq_u32 s28, 2
    s_cselect_b32 s36, 10240, 0
    s_cmp_eq_u32 s28, 3
    s_cselect_b32 s36, 21504, s36
    s_lshl_b32 s44, s33, 15
    s_add_u32 s44, s44, s36
    s_add_u32 s44, s44, {UX}
    s_mov_b32 s45, 0
    s_mov_b32 s48, 0
    ''')

    def dma():
        A('s_add_u32 s46, s45, s36')
        for m in range(3):
            A(f's_add_u32 m0, s46, {4096 * m}')
            A(f's_add_u32 s47, s44, {4096 * m}')
            for i in range(4 if m < 2 else 3):
                A(f'buffer_load_dwordx4 v2, s[4:7], s47 offen offset:{1024 * i} sc1 lds')
        A(f'''
        s_add_u32 s44, s44, {UX_S}
        s_add_u32 s45, s45, 40960
        s_cmp_eq_u32 s45, 163840
        s_cselect_b32 s45, 0, s45
        ''')
    A('s_mov_b32 s50, 1\nLpux_pro:')
    poll_block(A, 1, 160, 's50')
    dma()
    A('''
    s_add_u32 s50, s50, 1
    s_waitcnt vmcnt(0)
    s_barrier
    s_cmp_lt_u32 s50, 4
    s_cbranch_scc1 Lpux_pro
    s_cmp_eq_u32 s28, 1
    s_cbranch_scc1 Lpux1_loop
    ''')

    def xloop(L, two):
        ng = 2 if two else 1
        ops = (0,) if two else (0, 1)
        A(f'''
        {L}_loop:
        s_add_u32 s50, s24, 1
        ''')
        poll_block(A, 1, 161, 's50')
        A('s_add_u32 s50, s24, 4\ns_min_u32 s50, s50, 64')
        poll_block(A, 1, 160, 's50')
        A('''
        s_add_u32 s41, s40, 5120
        s_add_u32 s42, s40, 10240
        s_add_u32 s43, s40, 15360
        v_add_u32 v3, s48, v163
        v_add_u32 v0, s48, v164
        ''')
        blocks = [('m', b) for b in range(4)] + [('x', b, op) for b in range(8) for op in ops]

        def bread(k):
            bl = blocks[k]
            for z in range(2):
                d = v(112 + 8 * (k % 6) + 4 * z, 4)
                if bl[0] == 'm':
                    A(f'ds_read_b128 {d}, v0 offset:{(2 * bl[1] + z) * 1024}')
                else:
                    A(f'ds_read_b128 {d}, v3 offset:{(4 * bl[1] + 2 * z) * 1024 + bl[2] * 512}')
        p_loads(A, 16, 80, 40, ops)
        if two:
            for k in range(4):
                A(f's_add_u32 {s(52 + k)}, {s(40 + k)}, 20480')
            p_loads(A, 48, 96, 52, ops)
        for g in range(ng):
            A(f's_add_u32 s46, s49, {10240 * g}')
            A(f'buffer_load_dword {v(166 + g)}, v7, s[8:11], s46 offen')
            A(f'buffer_load_dword {v(168 + g)}, v162, s[4:7], s51 offen offset:{256 * g} sc1')
        dma()
        for k in range(6):
            bread(k)
        for r in range(8, 16):
            A(f'v_mov_b32 {v(r)}, 0')
        A('s_waitcnt vmcnt(11)')
        n = len(blocks)
        for k in range(n):
            A(f's_waitcnt lgkmcnt({2 * min(5, n - 1 - k)})')
            B = v(112 + 8 * (k % 6), 8)
            for g in range(ng):
                Af = (80 + 16 * g + 4 * k) if k < 4 else (16 + 32 * g + 4 * (k - 4))
                D = 8 + 4 * (g if two else (k & 1))
                A(f'{SM} {v(D, 4)}, {v(Af, 4)}, {B}, v4')
            if k + 6 < n:
                bread(k + 6)
        if not two:
            A('v_pk_add_f32 v[8:9], v[8:9], v[12:13]\nv_pk_add_f32 v[10:11], v[10:11], v[14:15]')
        for g in range(ng):
            D = 8 + 4 * g
            pack_rows(A, D, 170)
            A(f'''
            v_cvt_pk_bf16_f32 v170, {v(D)}, {v(D + 2)}
            v_lshlrev_b32 v171, 16, v170
            v_and_b32 v170, 0xffff0000, v170
            v_lshlrev_b32 v172, 16, {v(168 + g)}
            v_and_b32 v173, 0xffff0000, {v(168 + g)}
            v_mul_f32 v171, v171, v172
            v_mul_f32 v170, v170, v173
            v_cvt_pk_bf16_f32 v170, v171, v170
            v_lshlrev_b32 v171, 16, v170
            v_and_b32 v170, 0xffff0000, v170
            v_lshlrev_b32 v172, 16, {v(166 + g)}
            v_and_b32 v173, 0xffff0000, {v(166 + g)}
            v_add_f32 v171, v171, v172
            v_add_f32 v170, v170, v173
            v_cvt_pk_bf16_f32 {v(174 + g)}, v171, v170
            s_add_u32 s46, s49, {10240 * g}
            buffer_store_dword {v(174 + g)}, v7, s[12:15], s46 offen
            ''')
        le = A.lab('xe')
        A(f'''
        s_add_u32 s40, s40, {PX_S}
        s_add_u32 s49, s49, 40960
        s_add_u32 s51, s51, {GG_S}
        s_add_u32 s48, s48, 40960
        s_cmp_eq_u32 s48, 163840
        s_cselect_b32 s48, 0, s48
        s_add_u32 s24, s24, 1
        s_cmp_eq_u32 s24, 64
        s_cbranch_scc1 {le}
        s_waitcnt vmcnt({ng})
        s_barrier
        s_branch {L}_loop
        {le}:
        s_waitcnt vmcnt(0)
        s_endpgm
        ''')
    xloop('Lpux2', False)
    xloop('Lpux1', True)
```

```python
import os
import sys
sys.path.insert(0, os.path.dirname(os.path.abspath(__file__)))
from asmlib import Asm, pad_hazards, v, a, s
from layout import *
import roles_bulk as RB
import roles_rec as RR

NAME = 'recurrent_scan__memory_aug_recurrent_mem_tr__swiglu_ffn__prompt'


def build(opts):
    A = Asm()
    A.opts = opts
    A(f'''
    s_cmp_ge_u32 s2, 256
    s_cbranch_scc1 Lexit
    s_load_dwordx2 s[4:5], s[0:1], 104
    s_load_dwordx2 s[20:21], s[0:1], 96
    s_and_b32 s26, s2, 7
    s_lshr_b32 s27, s2, 3
    v_lshrrev_b32 v1, 6, v0
    v_and_b32 v0, 63, v0
    v_readfirstlane_b32 s28, v1
    s_mov_b32 s6, {WS_BYTES}
    s_mov_b32 s7, 0x20000
    s_mov_b32 s22, 256
    s_mov_b32 s23, 0x20000
    s_mov_b32 s25, {BUDGET}
    s_mov_b32 s29, 0x05040100
    s_mov_b32 s30, 0x07060302
    s_mov_b32 s24, 0
    s_waitcnt lgkmcnt(0)
    s_and_b32 s5, s5, 0xffff
    s_and_b32 s21, s21, 0xffff
    s_cmp_lt_u32 s27, 4
    s_cbranch_scc1 Lqk
    s_cmp_lt_u32 s27, 8
    s_cbranch_scc1 Lvum
    s_cmp_lt_u32 s27, 13
    s_cbranch_scc1 Lpu
    s_cmp_lt_u32 s27, 22
    s_cbranch_scc1 Lg1
    s_cmp_lt_u32 s27, 26
    s_cbranch_scc1 Lu
    s_cmp_lt_u32 s2, {26 * 8 + 12}
    s_cbranch_scc1 Lf1
    s_cmp_lt_u32 s2, {26 * 8 + 22}
    s_cbranch_scc1 Lf2
    Lexit:
    s_endpgm
    ''')
    RR.role_qk(A)
    RR.role_vum(A)
    RR.role_pu(A)
    RB.role_g1(A, False)
    RB.role_u(A)
    RB.role_g1(A, True)
    RB.role_f2(A)
    lines, nops = pad_hazards(A.l)
    hdr = open(os.path.join(os.path.dirname(os.path.abspath(__file__)), '..', 'cdna_kernels', NAME + '.s.ref')).read().split('\n')
    top = []
    for l in hdr:
        if l.startswith('; @launch'):
            break
        top.append(l)
    top.append('; @launch grid=(256,1,1) block=(256,1,1) lds=163840')
    doc = open(os.path.join(os.path.dirname(os.path.abspath(__file__)), 'header.txt')).read().rstrip('\n').split('\n')
    out = top + ['.amdgcn_target "amdgcn-amd-amdhsa--gfx950"', '.text', f'.globl {NAME}_kernel', '.p2align 8',
                 f'.type {NAME}_kernel,@function'] + doc + [f'{NAME}_kernel:']
    out += lines
    out += ['.section .rodata,"a"', '.p2align 6', f'.amdhsa_kernel {NAME}_kernel',
            '  .amdhsa_next_free_vgpr 512', '  .amdhsa_next_free_sgpr 102', '  .amdhsa_accum_offset 256',
            '  .amdhsa_group_segment_fixed_size 0', '  .amdhsa_kernarg_size 112', '  .amdhsa_user_sgpr_count 2',
            '  .amdhsa_user_sgpr_kernarg_segment_ptr 1', '  .amdhsa_system_sgpr_workgroup_id_x 1', '.end_amdhsa_kernel']
    return '\n'.join(out) + '\n', nops


if __name__ == '__main__':
    opts = dict(kv.split('=') for kv in sys.argv[2:])
    txt, nops = build(opts)
    open(sys.argv[1], 'w').write(txt)
    print(f'wrote {sys.argv[1]}: {len(txt)} bytes, {txt.count(chr(10))} lines, {nops} pad states')
```

```python
from asmlib import v, a, s

WS_BYTES = 268435456
BUDGET = 30000
NARR = 232
PAGE = 2 << 20
BLK = 16384
LDSW = 163836
NCAL = 8

XN_S = 40960
QKV_S = 32 * 12288
UX_S = 40 * 32768
HH_S = 98304
GG_S = 40960
PX_S = 4 * 20480
PP_S = 4 * BLK
MM_S = 2 * BLK
UM_S = 40 * BLK

FG = 0
FU = 4096
FF1 = 4608
FF2 = 4864
MM = 0
PP = 8 * BLK
DBA = 24 * BLK
DBB = 28 * BLK
PROF = 250 << 20
XN = 7 << 20
QX = XN + 65 * XN_S
KX = QX + 64 * QKV_S
VX = KX + 65 * QKV_S
UX = VX + 65 * QKV_S
HH = UX + 64 * UX_S
GG = HH + 65 * HH_S
PX = GG + 64 * GG_S
WS_END = PX + 64 * PX_S
assert WS_END <= WS_BYTES
for _b in (XN, QX, KX, VX, UX, HH, GG, PX):
    assert _b % 1024 == 0

OOB = 0x7ff00000
LOG2E = 1.4426950408889634


def f32(x):
    import struct
    return '0x%08x' % struct.unpack('<I', struct.pack('<f', x))[0]


def srd(A, reg, karg, nbytes):
    A(f's_load_dwordx2 {s(reg, 2)}, s[0:1], {karg}')
    A(f's_mov_b32 {s(reg + 2)}, {nbytes}')
    A(f's_mov_b32 {s(reg + 3)}, 0x20000')


def srd_fin(A, *regs):
    A('s_waitcnt lgkmcnt(0)')
    for r in regs:
        A(f's_and_b32 {s(r + 1)}, {s(r + 1)}, 0xffff')


def lane0_off(A, vd, sval):
    A(f'v_mov_b32 {v(vd)}, {sval}')
    A(f'v_mov_b32 v1, {OOB}')
    A(f'v_cmp_eq_u32 vcc, 0, v0')
    A(f'v_cndmask_b32 {v(vd)}, v1, {v(vd)}, vcc')


def arrive(A, nafter, vt):
    l = A.lab('arr')
    A(f's_waitcnt vmcnt({nafter})')
    A('s_barrier')
    A('s_cmp_lg_u32 s28, 0')
    A(f's_cbranch_scc1 {l}')
    A(f'v_mov_b32 {v(vt)}, 1')
    A('s_mov_b64 exec, 1')
    A(f'buffer_atomic_add {v(vt)}, off, s[20:23], 0 sc1')
    A('s_mov_b64 exec, -1')
    A(f'{l}:')


def retry(A, back, fwd, sleep=0):
    A('s_cmp_eq_u32 s25, 0')
    A(f's_cbranch_scc1 {fwd}')
    A('s_sub_u32 s25, s25, 1')
    if sleep:
        A(f's_sleep {sleep}')
    A(f's_branch {back}')


def gwait(A, vt, ptmp=144, hot=False):
    l0, l1, l2 = A.lab('gw'), A.lab('gwd'), A.lab('gwe')
    mark(A, 1)
    A('s_cmp_lg_u32 s28, 0')
    A(f's_cbranch_scc1 {l1}')
    A(f'{l0}:')
    A(f'buffer_load_dword {v(vt)}, off, s[20:23], 0 sc1')
    A('s_waitcnt vmcnt(0)')
    A(f'v_and_b32 {v(vt + 1)}, 0xffff, {v(vt)}')
    A(f'v_cmp_gt_u32 vcc, {NARR}, {v(vt + 1)}')
    A(f's_cbranch_vccz {l2}')
    retry(A, l0, l2, 4)
    A(f'{l2}:')
    if hot:
        A(f'v_mov_b32 {v(vt + 1)}, {LDSW}\nds_write_b32 {v(vt + 1)}, {v(vt)}\ns_waitcnt lgkmcnt(0)')
    A(f'{l1}:')
    A('s_barrier')
    if hot:
        A(f'''
        v_mov_b32 {v(vt + 1)}, {LDSW}
        ds_read_b32 {v(vt)}, {v(vt + 1)}
        s_waitcnt lgkmcnt(0)
        v_readfirstlane_b32 s46, {v(vt)}
        s_bfe_u32 s47, s46, 0x10010
        s_lshl_b32 s47, s47, 13
        s_add_u32 s88, s88, s47
        s_bfe_u32 s47, s46, 0x10011
        s_lshl_b32 s47, s47, 13
        s_add_u32 s89, s89, s47
        ''')
    mark(A, 2)
    pflush(A, ptmp, True)


def poll_block(A, vt, voff, starget, sleep=1):
    l0, l1 = A.lab('pl'), A.lab('pld')
    A(f'{l0}:')
    A(f'buffer_load_dword {v(vt)}, {v(voff)}, s[4:7], 0 offen sc1')
    A('s_waitcnt vmcnt(0)')
    A(f'v_cmp_gt_u32 vcc, {starget}, {v(vt)}')
    A(f's_cbranch_vccz {l1}')
    retry(A, l0, l1, sleep)
    A(f'{l1}:')


def bell_offs(A, vd, sidx, base):
    A(f'''
    s_lshl_b32 s46, {sidx}, 7
    s_add_u32 s46, s46, {base}
    v_lshl_add_u32 {v(vd)}, v0, 14, s46
    s_cmp_eq_u32 s28, 0
    s_cselect_b32 s46, 4, 0
    v_mov_b32 v1, {OOB}
    v_cmp_gt_u32 vcc, s46, v0
    v_cndmask_b32 {v(vd)}, v1, {v(vd)}, vcc
    v_mov_b32 v1, 0
    s_add_u32 s46, s89, 8192
    buffer_store_dword v1, {v(vd)}, s[4:7], s89 offen sc1
    buffer_store_dword v1, {v(vd)}, s[4:7], s46 offen sc1
    ''')


def bell_poll_offs(A, vd, vlane, n, base):
    A(f'''
    s_lshl_b32 s46, s26, 14
    s_add_u32 s46, s46, {base}
    v_min_u32 {v(vd)}, {n - 1}, {v(vlane)}
    v_lshl_add_u32 {v(vd)}, {v(vd)}, 7, s46
    ''')


def gate(A, L, voff, starget, vt=1):
    A(f'''
    {L}_gate:
    buffer_load_dword {v(vt)}, {v(voff)}, s[4:7], s89 offen sc1
    s_waitcnt vmcnt(0)
    v_cmp_gt_u32 vcc, {starget}, {v(vt)}
    s_cbranch_vccz {L}_open
    ''')
    retry(A, f'{L}_gate', f'{L}_open')
    A(f'{L}_open:')


def slot4(A, dst, step, add, stride, base):
    A(f's_add_u32 {dst}, {step}, {add}\ns_and_b32 {dst}, {dst}, 3\ns_mul_i32 {dst}, {dst}, {stride}\ns_add_u32 {dst}, {dst}, {base}' if add else
      f's_and_b32 {dst}, {step}, 3\ns_mul_i32 {dst}, {dst}, {stride}\ns_add_u32 {dst}, {dst}, {base}')


class SOff:
    def __init__(self, A, reg=31):
        self.A, self.reg, self.cur = A, reg, None

    def at(self, off):
        if self.cur is None or not (0 <= off - self.cur <= 4095):
            self.A(f's_mov_b32 {s(self.reg)}, {off}')
            self.cur = off
        d = off - self.cur
        return f'{s(self.reg)} offen' + (f' offset:{d}' if d else '')


def run_loader(A, groups, depth, between=None):
    n = len(groups)
    for g in range(min(depth, n)):
        groups[g][1](g % depth)
    if between:
        between(sum(groups[g][0] for g in range(min(depth, n))))
    for g in range(n):
        after = sum(groups[k][0] for k in range(g + 1, min(g + depth, n)))
        assert after <= 63
        A(f's_waitcnt vmcnt({after})')
        groups[g][2](g % depth)
        if g + depth < n:
            groups[g + depth][1](g % depth)


def put(A, dst, hi_src, lo_src, sel, tmp):
    if dst[0] == 'v':
        A(f'v_perm_b32 {v(dst[1])}, {hi_src}, {lo_src}, {sel}')
    else:
        A(f'v_perm_b32 {v(tmp)}, {hi_src}, {lo_src}, {sel}')
        A(f'v_accvgpr_write_b32 {a(dst[1])}, {v(tmp)}')


def pon(A):
    return A.opts.get('prof') == '1'


def mark(A, k):
    if pon(A):
        A(f's_memrealtime {s(70 + 2 * k, 2)}')


def pflush(A, tmp, first=False):
    if not pon(A):
        return
    if first:
        A(f's_lshl_b32 s86, s2, 2\ns_add_u32 s86, s86, s28\ns_mul_i32 s86, s86, {66 * 32}\ns_add_u32 s86, s86, {PROF}')
    A('s_waitcnt lgkmcnt(0)\ns_mov_b64 exec, 1')
    for k in range(7):
        A(f'v_mov_b32 {v(tmp + k)}, {s(70 + 2 * k)}')
    A(f'v_mov_b32 {v(tmp + 7)}, s25')
    A(f'buffer_store_dwordx4 {v(tmp, 4)}, off, s[4:7], s86')
    A(f'buffer_store_dwordx4 {v(tmp + 4, 4)}, off, s[4:7], s86 offset:16')
    A('s_mov_b64 exec, -1\ns_add_u32 s86, s86, 32')
```

```python
from asmlib import v, a, s
from layout import *

MF = 'v_mfma_f32_32x32x16_bf16'


def pair_groups(A, nks, load, dest, T0=80, tmp=144, half_sel=None):
    groups = []
    for ks in range(nks):
        def issue(slot, ks=ks):
            for e in range(8):
                load(ks, e, T0 + 8 * slot + e)

        def post(slot, ks=ks):
            b = T0 + 8 * slot
            k = 0
            for T in ((0, 1) if half_sel is None else (0,)):
                f, i = dest(ks, T)
                sel = half_sel if half_sel else ('s29', 's30')[T]
                for q in range(4):
                    put(A, (f, i + q), v(b + 2 * q + 1), v(b + 2 * q), sel, tmp + (k & 1))
                    k += 1
        groups.append((8, issue, post))
    return groups


def silu_mul(A, x, t, mul=None):
    for i, r in enumerate(x):
        A(f'v_mul_f32 {v(t[i])}, {f32(-LOG2E)}, {v(r)}')
    for i, r in enumerate(x):
        A(f'v_exp_f32 {v(t[i])}, {v(t[i])}')
    for i, r in enumerate(x):
        A(f'v_add_f32 {v(t[i])}, 1.0, {v(t[i])}')
    for i, r in enumerate(x):
        A(f'v_rcp_f32 {v(t[i])}, {v(t[i])}')
    if mul:
        for i, r in enumerate(x):
            A(f'v_mul_f32 {v(r)}, {v(r)}, {v(mul[i])}')
    for i, r in enumerate(x):
        A(f'v_mul_f32 {v(r)}, {v(r)}, {v(t[i])}')


def role_g1(A, ffn):
    L = 'Lf1' if ffn else 'Lg1'
    A(f'{L}:')
    A('v_and_b32 v9, 31, v0')
    A('v_lshrrev_b32 v10, 5, v0')
    A('v_lshlrev_b32 v6, 4, v0')
    if not ffn:
        A('''
        s_load_dwordx2 s[8:9], s[0:1], 16
        s_load_dwordx2 s[12:13], s[0:1], 24
        s_load_dwordx2 s[14:15], s[0:1], 32
        s_lshl_b32 s32, s27, 2
        s_add_u32 s32, s32, s28
        s_mul_i32 s33, s32, 57
        s_lshr_b32 s33, s33, 9
        s_mul_i32 s34, s33, 9
        s_sub_u32 s34, s32, s34
        s_lshl_b32 s35, s26, 3
        s_add_u32 s33, s33, s35
        s_mul_i32 s35, s34, 11
        s_lshr_b32 s35, s35, 5
        s_mul_i32 s36, s35, 3
        s_sub_u32 s36, s34, s36
        s_mov_b32 s10, 7864320
        s_mov_b32 s11, 0x20000
        s_waitcnt lgkmcnt(0)
        s_cmp_eq_u32 s35, 1
        s_cselect_b32 s8, s12, s8
        s_cselect_b32 s9, s13, s9
        s_cmp_eq_u32 s35, 2
        s_cselect_b32 s8, s14, s8
        s_cselect_b32 s9, s15, s9
        s_and_b32 s9, s9, 0xffff
        ''')
        A(f's_lshl_b32 s46, s33, 7\ns_lshl_b32 s47, s34, 2\ns_add_u32 s46, s46, s47\ns_add_u32 s46, s46, {FG}')
        lane0_off(A, 5, 's46')
        A('''
        v_and_b32 v11, 24, v9
        v_bfe_u32 v12, v9, 2, 1
        v_and_b32 v13, 3, v9
        v_lshl_add_u32 v12, v13, 1, v12
        v_add_u32 v11, v11, v12
        s_cmp_eq_u32 s35, 0
        s_cselect_b64 vcc, -1, 0
        v_cndmask_b32 v11, v9, v11, vcc
        s_mul_i32 s46, s33, 384
        s_lshl_b32 s47, s36, 7
        s_add_u32 s46, s46, s47
        v_lshl_add_u32 v2, v11, 2, s46
        v_mul_u32_u24 v12, 98304, v10
        v_add_u32 v2, v2, v12
        ''')
        lq, lk, ld = A.lab('gq'), A.lab('gk'), A.lab('gd')
        A(f'''
        s_mul_i32 s37, s33, 12288
        s_cmp_eq_u32 s35, 0
        s_cbranch_scc1 {lq}
        s_cmp_eq_u32 s35, 1
        s_cbranch_scc1 {lk}
        v_and_b32 v11, 19, v9
        v_bfe_u32 v12, v9, 2, 1
        v_lshl_add_u32 v11, v12, 3, v11
        v_bfe_u32 v12, v9, 3, 1
        v_lshl_add_u32 v11, v12, 2, v11
        v_lshlrev_b32 v11, 4, v11
        v_lshl_add_u32 v4, v10, 9, v11
        s_movk_i32 s38, 1024
        s_lshl_b32 s46, s36, 12
        s_add_u32 s37, s37, {VX}
        s_branch {ld}
        {lq}:
        v_lshrrev_b32 v11, 3, v9
        v_mul_u32_u24 v11, 3072, v11
        v_and_b32 v12, 7, v9
        v_lshl_add_u32 v11, v12, 4, v11
        v_lshl_add_u32 v4, v10, 7, v11
        s_movk_i32 s38, 256
        s_lshl_b32 s46, s36, 10
        s_add_u32 s37, s37, {QX}
        s_branch {ld}
        {lk}:
        v_and_b32 v11, 1, v9
        v_mul_u32_u24 v11, 6144, v11
        v_lshrrev_b32 v12, 1, v9
        v_lshl_add_u32 v11, v12, 4, v11
        v_lshl_add_u32 v4, v10, 8, v11
        s_movk_i32 s38, 512
        s_lshl_b32 s46, s36, 11
        s_add_u32 s37, s37, {KX}
        {ld}:
        s_add_u32 s37, s37, s46
        s_mov_b32 s42, {QKV_S}
        ''')
        so = SOff(A)

        def load(ks, e, t):
            A(f'buffer_load_dword {v(t)}, v2, s[8:11], {so.at((16 * ks + e) * 12288)}')
        nst = 4
    else:
        A(f'''
        s_load_dwordx2 s[8:9], s[0:1], 64
        s_load_dwordx2 s[12:13], s[0:1], 72
        s_lshl_b32 s32, s32, 2
        s_add_u32 s32, s32, s28
        s_lshl_b32 s46, s32, 2
        s_add_u32 s46, s46, {FF1}
        ''')
        lane0_off(A, 5, 's46')
        A(f'''
        v_and_b32 v11, 15, v9
        s_lshl_b32 s46, s32, 6
        v_lshl_add_u32 v11, v11, 2, s46
        v_mul_u32_u24 v12, 24576, v10
        v_add_u32 v12, v11, v12
        v_mov_b32 v13, 0
        s_waitcnt lgkmcnt(0)
        v_mov_b32 v2, s8
        v_mov_b32 v3, s9
        v_mov_b32 v14, s12
        v_mov_b32 v15, s13
        v_cmp_lt_u32 vcc, 15, v9
        v_cndmask_b32 v2, v2, v14, vcc
        v_cndmask_b32 v3, v3, v15, vcc
        v_lshl_add_u64 v[2:3], v[2:3], 0, v[12:13]
        s_movk_i32 s46, 6144
        s_mov_b32 s47, 0
        s_movk_i32 s48, 30720
        s_mov_b32 s49, 0
        v_mov_b32 v4, v6
        s_movk_i32 s38, 1024
        s_lshl_b32 s37, s32, 11
        s_add_u32 s37, s37, {HH}
        s_mov_b32 s42, {HH_S}
        ''')

        def load(ks, e, t):
            A(f'global_load_dword {v(t)}, v[2:3], off' + (' offset:3072' if e & 1 else ''))
            if e & 1 and not (ks == 39 and e == 7):
                A(f'v_lshl_add_u64 v[2:3], v[2:3], 0, {"s[48:49]" if e == 7 else "s[46:47]"}')
        nst = 2

    def wreg(ks, T):
        i = 2 * ks + T
        return ('a', 4 * i) if i < 64 else ('v', 192 + 4 * (i - 64))

    def wname(ks, T):
        f, i = wreg(ks, T)
        return f'{f}[{i}:{i + 3}]'

    A('v_mov_b32 v8, 0')
    A('buffer_store_dword v8, v5, s[4:7], 0 offen sc1')
    run_loader(A, pair_groups(A, 40, load, wreg), 8, between=lambda n: arrive(A, min(n, 63), 8))
    gwait(A, 8)

    def dma():
        for m in range(3):
            A(f's_add_u32 m0, s44, {4096 * m}')
            A(f's_add_u32 s46, s43, {4096 * m}')
            for i in range(4 if m < 2 else 2):
                A(f'buffer_load_dwordx4 v6, s[4:7], s46 offen offset:{1024 * i} sc1 lds')
    A(f'''
    s_mul_i32 s44, s28, 10240
    s_add_u32 s43, s44, {XN}
    ''')
    dma()
    A(f'''
    s_mov_b32 s45, 0
    s_waitcnt vmcnt(0)
    {L}_loop:
    s_waitcnt vmcnt({nst + 1})
    s_barrier
    v_add_u32 v7, s45, v6
    s_xor_b32 s45, s45, {XN_S}
    s_mul_i32 s44, s28, 10240
    s_add_u32 s44, s44, s45
    s_add_u32 s43, s43, {XN_S}
    ''')
    mark(A, 0)
    if pon(A):
        A('s_memtime s[72:73]')
    pflush(A, 64)
    for k in range(3):
        A(f'ds_read_b128 {v(48 + 4 * k, 4)}, v7 offset:{1024 * k}')
    dma()
    A('v_mov_b32 v8, s24')
    for ks in range(40):
        if ks + 3 < 40:
            A(f'ds_read_b128 {v(48 + 4 * ((ks + 3) % 4), 4)}, v7 offset:{1024 * (ks + 3)}')
        A(f's_waitcnt lgkmcnt({min(3, 39 - ks)})')
        B = v(48 + 4 * (ks % 4), 4)
        for T in range(2):
            D = v(16 + 16 * T, 16)
            A(f'{MF} {D}, {wname(ks, T)}, {B}, {D if ks else 0}')
        if ks == int(A.opts.get('gflag', 28)):
            A('s_waitcnt vmcnt(10)')
            A('buffer_store_dword v8, v5, s[4:7], 0 offen sc1')
    A('s_add_u32 s39, s37, s38\ns_add_u32 s40, s39, s38\ns_add_u32 s41, s40, s38')
    so_a = ['s37', 's39', 's40', 's41']
    if not ffn:
        for aa in range(4):
            for c in range(4):
                r = 4 * aa + c
                A(f'v_cvt_pk_bf16_f32 {v(64 + r)}, {v(16 + r)}, {v(32 + r)}')
            A(f'buffer_store_dwordx4 {v(64 + 4 * aa, 4)}, v4, s[4:7], {so_a[aa]} offen sc1')
    else:
        for aa in range(2):
            g = [16 + 4 * aa + c for c in range(4)] + [32 + 4 * aa + c for c in range(4)]
            u = [x + 8 for x in g]
            silu_mul(A, g, list(range(72, 80)), u)
            for c in range(4):
                A(f'v_cvt_pk_bf16_f32 {v(64 + 4 * aa + c)}, {v(g[c])}, {v(g[4 + c])}')
            A(f'buffer_store_dwordx4 {v(64 + 4 * aa, 4)}, v4, s[4:7], {so_a[aa]} offen sc1')
    A(f'''
    s_add_u32 s37, s37, s42
    s_add_u32 s24, s24, 1
    s_cmp_lt_u32 s24, 64
    s_cbranch_scc1 {L}_loop
    v_mov_b32 v8, 64
    s_waitcnt vmcnt(0)
    buffer_store_dword v8, v5, s[4:7], 0 offen sc1
    s_endpgm
    ''')


def stream_loop(A, L, nld, ldreg, block, epilogue, seg_stride):
    def loads(lo, hi, cond):
        for ks in range(lo, hi):
            A(f'buffer_load_dwordx4 {v(ldreg + 4 * ks, 4)}, v6, s[4:7], {s(43 + ks // 4)} offen offset:{1024 * (ks % 4)} sc1')

    def bump(first):
        if not first:
            A(f's_add_u32 s43, s43, {seg_stride}')
        for k in range(1, (nld + 3) // 4):
            A(f's_add_u32 {s(43 + k)}, s43, {4096 * k}')
    A('s_mov_b32 s50, 1')
    poll_block(A, 9, 7, 's50')
    bump(True)
    loads(0, nld, False)
    A('buffer_load_dword v9, v7, s[4:7], 0 offen sc1')
    A(f'{L}_loop:')
    bump(False)
    A(f'''
    v_mov_b32 v8, s24
    s_add_u32 s50, s24, 2
    s_min_u32 s50, s50, 64
    s_waitcnt vmcnt(0)
    buffer_store_dword v8, v5, s[4:7], 0 offen sc1
    v_cmp_gt_u32 vcc, s50, v9
    s_cmp_eq_u64 vcc, 0
    s_cselect_b32 s51, 1, 0
    ''')
    mark(A, 0)
    if pon(A):
        A('s_mov_b32 s72, s51')
    pflush(A, 184)
    for ks in range(nld):
        block(ks)
        l = A.lab('pf')
        A(f's_cmp_eq_u32 s51, 0\ns_cbranch_scc1 {l}')
        loads(ks, ks + 1, True)
        A(f'{l}:')
    epilogue()
    l = A.lab('late')
    A(f's_cmp_eq_u32 s51, 1\ns_cbranch_scc1 {l}')
    poll_block(A, 9, 7, 's50')
    loads(0, nld, False)
    A(f'''
    {l}:
    buffer_load_dword v9, v7, s[4:7], 0 offen sc1
    s_add_u32 s24, s24, 1
    s_cmp_lt_u32 s24, 64
    s_cbranch_scc1 {L}_loop
    v_mov_b32 v8, 64
    s_waitcnt vmcnt(0)
    buffer_store_dword v8, v5, s[4:7], 0 offen sc1
    s_endpgm
    ''')


def role_u(A):
    A('Lu:')
    srd(A, 8, 40, 7864320)
    A(f'''
    s_sub_u32 s33, s27, 18
    s_lshl_b32 s46, s26, 3
    s_add_u32 s33, s33, s46
    v_and_b32 v9, 31, v0
    v_lshrrev_b32 v10, 5, v0
    v_lshlrev_b32 v6, 4, v0
    s_lshl_b32 s46, s28, 7
    s_lshl_b32 s47, s33, 2
    s_add_u32 s46, s46, s47
    s_add_u32 s46, s46, {FU}
    ''')
    lane0_off(A, 5, 's46')
    A(f'''
    v_and_b32 v11, 3, v0
    v_min_u32 v11, 2, v11
    s_lshl_b32 s46, s33, 7
    s_add_u32 s46, s46, {FG + 24}
    v_lshl_add_u32 v7, v11, 2, s46
    s_mul_i32 s46, s33, 245760
    v_mul_u32_u24 v11, 10240, v10
    v_lshl_add_u32 v11, v9, 2, v11
    v_add_u32 v11, s46, v11
    s_lshl_b32 s47, s28, 8
    v_add_u32 v2, s47, v11
    s_lshr_b32 s47, s28, 1
    s_lshl_b32 s47, s47, 7
    s_add_u32 s47, s47, 1024
    v_add_u32 v3, s47, v11
    s_bitcmp1_b32 s28, 0
    s_cselect_b32 s52, s30, s29
    v_lshrrev_b32 v11, 3, v9
    v_lshlrev_b32 v11, 15, v11
    v_and_b32 v12, 7, v9
    v_lshl_add_u32 v11, v12, 4, v11
    v_lshl_add_u32 v4, v10, 8, v11
    s_lshl_b32 s37, s33, 10
    s_add_u32 s37, s37, {UX}
    s_lshl_b32 s46, s28, 18
    s_lshr_b32 s47, s28, 1
    s_add_u32 s47, s47, 8
    s_lshl_b32 s47, s47, 17
    s_and_b32 s48, s28, 1
    s_lshl_b32 s48, s48, 7
    s_add_u32 s47, s47, s48
    s_add_u32 s39, s37, s47
    s_add_u32 s37, s37, s46
    s_mul_i32 s43, s33, 12288
    s_add_u32 s43, s43, {VX}
    v_mov_b32 v8, 0
    buffer_store_dword v8, v5, s[4:7], 0 offen sc1
    ''')
    srd_fin(A, 8)
    so = SOff(A)
    groups = []
    for blk in range(3):
        def load(ks, e, t, blk=blk):
            A(f'buffer_load_dword {v(t)}, {"v3" if blk == 2 else "v2"}, s[8:11], {so.at((16 * ks + e) * 1280 + (128 if blk == 1 else 0))}')
        groups += pair_groups(A, 12, load, lambda ks, T, blk=blk: ('a', 4 * ((2 * blk + T) * 12 + ks)),
                              half_sel='s52' if blk == 2 else None)
    run_loader(A, groups, 8, between=lambda n: arrive(A, min(n, 63), 8))
    gwait(A, 8)

    def block(ks):
        for tt in range(5):
            D = v(64 + 16 * tt, 16)
            A(f'{MF} {D}, {v(16 + 4 * ks, 4)}, {a(4 * (tt * 12 + ks), 4)}, {D if ks else 0}')

    def epilogue():
        A('s_add_u32 s38, s37, 131072')
        for tt in range(5):
            so_t = ['s37', 's37', 's38', 's38', 's39'][tt]
            for c in range(2):
                p = 144 + 8 * tt + 4 * c
                for q in range(4):
                    r = 64 + 16 * tt + 8 * c + 2 * q
                    A(f'v_cvt_pk_bf16_f32 {v(p + q)}, {v(r)}, {v(r + 1)}')
                off = (128 * (tt % 2) if tt < 4 else 0) + 512 * c
                A(f'buffer_store_dwordx4 {v(p, 4)}, v4, s[4:7], {so_t} offen offset:{off} sc1')
        A(f's_add_u32 s37, s37, {UX_S}\ns_add_u32 s39, s39, {UX_S}')
    stream_loop(A, 'Lu', 12, 16, block, epilogue, QKV_S)


def role_f2(A):
    A('Lf2:')
    srd(A, 8, 80, 1966080)
    A(f'''
    s_sub_u32 s33, s32, 12
    v_and_b32 v9, 31, v0
    v_lshrrev_b32 v10, 5, v0
    v_lshlrev_b32 v6, 4, v0
    s_lshl_b32 s34, s33, 2
    s_add_u32 s34, s34, s28
    s_lshl_b32 s46, s34, 2
    s_add_u32 s46, s46, {FF2}
    ''')
    lane0_off(A, 5, 's46')
    A(f'''
    v_and_b32 v11, 15, v0
    v_min_u32 v11, 11, v11
    s_mul_i32 s46, s28, 48
    s_add_u32 s46, s46, {FF1}
    v_lshl_add_u32 v7, v11, 2, s46
    s_mul_i32 s46, s28, {384 * 1280}
    s_lshl_b32 s47, s33, 7
    s_add_u32 s46, s46, s47
    v_mul_u32_u24 v11, 10240, v10
    v_lshl_add_u32 v11, v9, 2, v11
    v_add_u32 v2, s46, v11
    v_lshlrev_b32 v11, 5, v9
    v_lshl_add_u32 v4, v10, 4, v11
    s_lshl_b32 s37, s34, 10
    s_add_u32 s37, s37, {GG}
    s_mul_i32 s43, s28, 24576
    s_add_u32 s43, s43, {HH}
    s_lshl_b32 s46, s28, 13
    v_add_u32 v12, s46, v6
    s_lshl_b32 s46, s28, 11
    v_add_u32 v13, s46, v6
    v_mov_b32 v8, 0
    buffer_store_dword v8, v5, s[4:7], 0 offen sc1
    ''')
    srd_fin(A, 8)
    so = SOff(A)

    def load(ks, e, t):
        A(f'buffer_load_dword {v(t)}, v2, s[8:11], {so.at((16 * ks + e) * 1280)}')
    run_loader(A, pair_groups(A, 24, load, lambda ks, T: ('a', 4 * (2 * ks + T))), 8,
               between=lambda n: arrive(A, min(n, 63), 8))
    gwait(A, 8)

    def block(ks):
        for T in range(2):
            D = v(112 + 16 * T, 16)
            A(f'{MF} {D}, {a(4 * (2 * ks + T), 4)}, {v(16 + 4 * ks, 4)}, {D if ks else 0}')

    def epilogue():
        for aa in range(4):
            for T in range(2):
                A(f'ds_write_b128 v12, {v(112 + 16 * T + 4 * aa, 4)} offset:{(2 * aa + T) * 1024}')
        A('s_waitcnt lgkmcnt(0)\ns_barrier')
        for src in range(4):
            for T in range(2):
                A(f'ds_read_b128 {v(144 + 8 * src + 4 * T, 4)}, v13 offset:{src * 8192 + T * 1024}')
        A('v_xor_b32 v12, 0x8000, v12\nv_xor_b32 v13, 0x8000, v13')
        for src in range(1, 4):
            A(f's_waitcnt lgkmcnt({6 - 2 * src})')
            for i in range(0, 8, 2):
                A(f'v_pk_add_f32 {v(144 + i, 2)}, {v(144 + i, 2)}, {v(144 + 8 * src + i, 2)}')
        silu_mul(A, list(range(144, 152)), list(range(152, 160)))
        for c in range(4):
            A(f'v_cvt_pk_bf16_f32 {v(176 + c)}, {v(144 + c)}, {v(148 + c)}')
        A('buffer_store_dwordx4 v[176:179], v4, s[4:7], s37 offen sc1')
        A(f's_add_u32 s37, s37, {GG_S}')
    stream_loop(A, 'Lf2', 24, 16, block, epilogue, HH_S)
```

```python
from asmlib import v, a, s
from layout import *

SM = 'v_smfmac_f32_16x16x64_bf16'
ROWP = [0, 1, 8, 9, 2, 3, 10, 11]
KXB = 131072
QB = KXB + 12288
KB = QB + 3072
PSB = KB + 3072
VB = 131072
SCALE = 192 ** -0.5
PERS = {153: 8, 154: 9, 155: 10, 156: 11, 157: 12, 158: 13, 159: 14}


def fplace(f):
    if f < 8:
        return ('l', f)
    if f >= 52:
        return ('l', f - 44)
    if f < 40:
        return ('a', 8 * (f - 8))
    return ('v', 160 + 8 * (f - 40))


def fname(f):
    k, i = fplace(f)
    if k == 'l':
        return v(96 + 8 * (i % 8), 8)
    return f'{k}[{i}:{i + 7}]'


def stage_read(A, idx):
    for z in range(2):
        A(f'ds_read_b128 {v(96 + 8 * (idx % 8) + 4 * z, 4)}, v3 offset:{idx * 2048 + z * 1024}')


class FragSink:
    def __init__(self, A):
        self.A, self.k = A, 0

    def quad(self, f, z, srcs):
        A = self.A
        kind, i = fplace(f)
        if kind == 'l':
            t = 144 + 4 * (self.k & 1)
            self.k += 1
            for q, (hi, lo, sel) in enumerate(srcs):
                A(f'v_perm_b32 {v(t + q)}, {hi}, {lo}, {sel}')
            A(f'ds_write_b128 v3, {v(t, 4)} offset:{i * 2048 + z * 1024}')
        else:
            for q, (hi, lo, sel) in enumerate(srcs):
                put(A, (kind, i + 4 * z + q), hi, lo, sel, 152 + (q & 1))


def common_lane(A):
    A('''
    v_lshlrev_b32 v2, 4, v0
    s_lshl_b32 s46, s28, 15
    v_add_u32 v3, s46, v2
    v_and_b32 v9, 15, v0
    v_lshrrev_b32 v10, 4, v0
    v_mov_b32 v4, 0x44444444
    v_mov_b32 v1, 0xeeeeeeee
    v_cmp_lt_u32 vcc, 7, v9
    v_cndmask_b32 v4, v4, v1, vcc
    v_and_b32 v11, 1, v10
    v_lshlrev_b32 v8, 2, v11
    v_lshrrev_b32 v1, 1, v10
    v_add_u32 v11, v8, v1
    v_lshl_add_u32 v8, v1, 4, v8
    v_mov_b32 v12, -1
    v_mov_b32 v13, -1
    v_mov_b32 v14, -1
    v_mov_b32 v15, -1
    ''')


def mem_phase(A, L, ntile, acc, hook):
    def loads(lo):
        for t in range(lo, 10):
            A(f'buffer_load_dwordx4 {v(16 + 4 * t, 4)}, v2, s[4:7], {s(40 + t // 4)} offen offset:{1024 * (t % 4)} sc1')

    def check(t):
        m = 16 + 4 * t
        return [f's_waitcnt vmcnt({9 - t})', f'v_max3_u32 v1, {v(m)}, {v(m + 1)}, {v(m + 2)}',
                f'v_max_u32 v1, v1, {v(m + 3)}', 'v_cmp_eq_u32 vcc, -1, v1']
    loads(0)
    hook('top', 0, None)
    A('s_waitcnt lgkmcnt(0)')
    A(*check(0))
    A(f's_cbranch_vccnz {L}_R0')
    for t in range(10):
        A(f'{L}_G{t}:')
        if t == 0:
            mark(A, 1)
        hook('pre', t, None)
        ck = check(t + 1) if t < 9 else []
        for j in range(ntile):
            f = ntile * t + j
            hook('mf', t, f)
            A(f'{SM} {v(acc + 4 * j, 4)}, {v(16 + 4 * t, 4)}, {fname(f)}, v4')
            if f < 8:
                stage_read(A, f + 8)
            if ck and j == ntile - 3:
                A(*ck[:2])
            if ck and j == ntile - 2:
                A(*ck[2:])
        if t < 9:
            A(f's_cbranch_vccnz {L}_R{t + 1}')

    def ool():
        for t in range(10):
            A(f'{L}_R{t}:')
            A(f's_cmp_eq_u32 s25, 0\ns_cbranch_scc1 {L}_G{t}\ns_sub_u32 s25, s25, 1')
            loads(t)
            A(*check(t))
            A(f's_cbranch_vccnz {L}_R{t}\ns_branch {L}_G{t}')
    return ool


def half_sum(A, D):
    A(f'v_permlane32_swap_b32 {v(D)}, {v(D + 1)}')
    A(f'v_permlane32_swap_b32 {v(D + 2)}, {v(D + 3)}')


def half_add(A, D):
    A(f'v_add_f32 {v(D)}, {v(D)}, {v(D + 1)}')
    A(f'v_add_f32 {v(D + 2)}, {v(D + 2)}, {v(D + 3)}')


def scores_softmax(A, Q, D, masked, soff, ring=lambda p: None):
    KXR = {(0, 0): 80, (1, 0): 88, (0, 1): 16, (1, 1): 24, (0, 2): 32, (1, 2): 40}
    for kb in range(3):
        if not masked:
            A(f's_waitcnt lgkmcnt({8 - kb})')
        for T in range(2):
            A(f'{SM} {v(D + 4 + 4 * T, 4)}, {v(Q + 4 * kb, 4)}, {v(KXR[T, kb], 8)}, v4')
    for kb in range(3):
        A(f's_waitcnt lgkmcnt({4 - 2 * kb})')
        A(f'{SM} {v(D, 4)}, {v(Q + 4 * kb, 4)}, {v(108 + 8 * kb, 8)}, v4')
    Dm, D0, D1 = D, D + 4, D + 8
    ring('s')
    A('v_add_u32 v151, s59, v2')
    for d in (D0, D1, Dm):
        half_sum(A, d)
    for d in (D0, D1, Dm):
        half_add(A, d)
    if masked:
        for i, r in enumerate((D0, D1, D0 + 2, D1 + 2)):
            A(f'v_cndmask_b32_e64 {v(r)}, v7, {v(r)}, {s(60 + 2 * i, 2)}')
    A(f'v_max3_f32 v144, {v(Dm)}, {v(D0)}, {v(D1)}')
    A(f'v_max3_f32 v145, {v(Dm + 2)}, {v(D0 + 2)}, {v(D1 + 2)}')
    for k in (8, 4, 2, 1):
        for t in (144, 145):
            A(f'v_max_f32_dpp {v(t)}, {v(t)}, {v(t)} row_ror:{k} row_mask:0xf bank_mask:0xf')
    ring('t')
    A('v_mul_f32 v144, s58, v144\nv_mul_f32 v145, s58, v145')
    for o, t in ((0, 144), (2, 145)):
        for d in (D0, D1, Dm):
            A(f'v_fma_f32 {v(d + o)}, {v(d + o)}, s58, -{v(t)}')
    for o in (0, 2):
        for d in (D0, D1, Dm):
            A(f'v_exp_f32 {v(d + o)}, {v(d + o)}')
    for o, t in ((0, 146), (2, 147)):
        A(f'v_add_f32 {v(t)}, {v(D0 + o)}, {v(D1 + o)}')
    for o, t in ((0, 146), (2, 147)):
        A(f'v_fma_f32 {v(t)}, {v(Dm + o)}, 0.5, {v(t)}')
    for k in (8, 4, 2, 1):
        for t in (146, 147):
            A(f'v_add_f32_dpp {v(t)}, {v(t)}, {v(t)} row_ror:{k} row_mask:0xf bank_mask:0xf')
    ring('u')
    A('v_rcp_f32 v146, v146\nv_rcp_f32 v147, v147')
    for o, t in ((0, 146), (2, 147)):
        for d in (D0, D1, Dm):
            A(f'v_mul_f32 {v(d + o)}, {v(d + o)}, {v(t)}')
    A(f'v_cvt_pk_bf16_f32 v148, {v(D0)}, {v(D1)}')
    A(f'v_cvt_pk_bf16_f32 v149, {v(D0 + 2)}, {v(D1 + 2)}')
    A(f'v_cndmask_b32_e64 v150, {v(Dm)}, {v(Dm + 2)}, s[68:69]')
    A('ds_write_b32 v9, v148')
    A('v_cvt_pk_bf16_f32 v150, v150, v150')
    A('ds_write_b32 v9, v149 offset:32')
    A('ds_write_b16 v10, v150')
    A('ds_read_b128 v[144:147], v151')
    A('s_waitcnt lgkmcnt(0)')
    A(f'buffer_store_dwordx4 v[144:147], v6, s[4:7], {soff} offen sc1')


def role_cal(A):
    A(f'''
    Lcal:
    s_cmp_ge_u32 s28, 2
    s_cbranch_scc1 Lexit
    s_mul_i32 s46, s28, {PAGE}
    s_add_u32 s40, s88, s46
    s_add_u32 s40, s40, {120 * BLK}
    v_lshlrev_b32 v2, 11, v0
    v_mov_b32 v3, 0
    buffer_store_dword v3, v2, s[4:7], s40 offen sc1
    s_mov_b32 s44, -1
    s_mov_b32 s45, -1
    s_mov_b64 exec, 1
    s_waitcnt vmcnt(0)
    ''')
    for k in range(2 * NCAL):
        hf, i = k & 1, k >> 1
        off = (i % 8) * BLK + hf * 8192 + ((i >> 1) & 1) * 4096 + (i // 8) * 2048
        A(f'''
        s_add_u32 s41, s40, {off}
        s_memtime s[42:43]
        s_waitcnt lgkmcnt(0)
        buffer_load_dword v3, off, s[4:7], s41 sc1
        s_waitcnt vmcnt(0)
        s_memtime s[46:47]
        s_waitcnt lgkmcnt(0)
        s_sub_u32 s46, s46, s42
        s_min_u32 {s(44 + hf)}, {s(44 + hf)}, s46
        ''')
        if pon(A):
            A(f'v_mov_b32 v4, s46\ns_lshl_b32 s47, s28, 8\ns_add_u32 s47, s47, {PROF + (26 * 8 * 4) * 66 * 32 + 4 * k}\nbuffer_store_dword v4, off, s[4:7], s47')
    A(f'''
    s_cmp_lt_u32 s45, s44
    s_cselect_b32 s46, 0x10000, 0
    {'s_xor_b32 s46, s46, 0x10000' if A.opts.get('far') == '1' else ''}
    s_lshl_b32 s46, s46, s28
    s_add_u32 s46, s46, 1
    v_mov_b32 v3, s46
    buffer_atomic_add v3, off, s[20:23], 0 sc1
    s_endpgm
    ''')


def role_qk(A):
    A('Lqk:')
    A(f'''
    s_load_dwordx2 s[8:9], s[0:1], 16
    s_load_dwordx2 s[12:13], s[0:1], 24
    s_mov_b32 s10, 7864320
    s_mov_b32 s11, 0x20000
    s_lshl_b32 s33, s26, 3
    s_add_u32 s33, s33, s27
    s_mul_i32 s53, s26, {BLK - 5120}
    s_add_u32 s53, s53, {PP}
    ''')
    common_lane(A)
    A(f'''
    s_and_b32 s46, s28, 1
    s_mul_i32 s47, s46, 192
    s_mul_i32 s48, s33, 384
    s_add_u32 s47, s47, s48
    v_mul_u32_u24 v6, 12288, v8
    v_mul_u32_u24 v1, 12, v9
    v_add3_u32 v6, v6, v1, s47
    s_mul_i32 s48, s33, 640
    v_add_u32 v5, s48, v2
    v_mov_b32 v1, {OOB}
    v_cmp_gt_u32 vcc, 40, v0
    v_cndmask_b32 v5, v1, v5, vcc
    s_and_b32 s46, s28, 1
    s_mul_i32 s46, s46, {PP_S}
    s_lshr_b32 s47, s28, 1
    s_lshl_b32 s47, s47, 13
    s_add_u32 s46, s46, s47
    s_add_u32 s46, s46, s53
    s_add_u32 s46, s46, s89
    buffer_store_dwordx4 v[12:15], v5, s[4:7], s46 offen sc1
    s_waitcnt lgkmcnt(0)
    s_cmp_ge_u32 s28, 2
    s_cselect_b32 s8, s12, s8
    s_cselect_b32 s9, s13, s9
    s_and_b32 s9, s9, 0xffff
    ''')
    bell_offs(A, 15, 's33', DBA)
    so = SOff(A)
    sink = FragSink(A)
    groups = []
    for t in range(10):
        for z in range(2):
            def issue(slot, t=t, z=z):
                for e in range(8):
                    A(f'buffer_load_dwordx3 {v(16 + 32 * slot + 4 * e, 3)}, v6, s[8:11], {so.at((64 * t + 32 * z + ROWP[e]) * 12288)}')

            def post(slot, t=t, z=z):
                b = 16 + 32 * slot
                for j in range(6):
                    sink.quad(6 * t + j, z, [(v(b + 8 * q + 4 + j // 2), v(b + 8 * q + j // 2), ('s29', 's30')[j % 2]) for q in range(4)])
            groups.append((8, issue, post))
    run_loader(A, groups, 4, between=lambda n: arrive(A, n, 7))
    A('v_mov_b32 v152, v15')
    lq, ld = A.lab('xq'), A.lab('xd')
    A(f'''
    v_mov_b32 v6, v5
    v_add_u32 v5, {KXB}, v2
    v_mov_b32 v7, {f32(-3.0e38)}
    s_and_b32 s46, s28, 1
    s_mul_i32 s46, s46, 48
    v_mul_u32_u24 v16, 3, v9
    v_add_u32 v16, s46, v16
    s_cmp_lt_u32 s28, 2
    s_cbranch_scc1 {lq}
    ''')
    for m in range(3):
        A(f'''
        v_add_u32 v17, {m}, v16
        v_lshrrev_b32 v18, 2, v17
        v_and_b32 v17, 3, v17
        v_lshlrev_b32 v18, 7, v18
        v_lshl_add_u32 v17, v17, 2, v18
        v_lshl_add_u32 v17, v11, 4, v17
        v_add_u32 {v(156 + m)}, {KB}, v17
        ''')
    A(f's_branch {ld}\n{lq}:')
    for m in range(3):
        A(f'''
        v_add_u32 v17, {m}, v16
        v_lshrrev_b32 v18, 3, v17
        v_lshlrev_b32 v18, 8, v18
        v_and_b32 v19, 1, v17
        v_lshl_add_u32 v18, v19, 7, v18
        v_bfe_u32 v19, v17, 1, 2
        v_lshl_add_u32 v18, v19, 2, v18
        v_lshl_add_u32 v18, v11, 4, v18
        v_add_u32 {v(156 + m)}, {QB}, v18
        ''')
    A(f'''
    {ld}:
    v_and_b32 v17, 7, v9
    v_lshlrev_b32 v18, 7, v10
    v_lshl_add_u32 v18, v17, 4, v18
    v_add_u32 v159, {KB}, v18
    s_lshl_b32 s48, s28, 10
    s_add_u32 s48, s48, {PSB}
    s_mov_b32 s59, s48
    v_lshrrev_b32 v18, 3, v9
    v_lshlrev_b32 v19, 8, v18
    v_and_b32 v20, 1, v9
    v_lshl_add_u32 v19, v20, 7, v19
    v_lshl_add_u32 v19, v11, 4, v19
    v_bfe_u32 v21, v9, 1, 2
    v_lshl_add_u32 v19, v21, 2, v19
    v_add_u32 v154, s48, v19
    v_lshl_add_u32 v18, v18, 1, v11
    v_bfe_u32 v19, v9, 1, 1
    v_lshlrev_b32 v19, 6, v19
    v_lshl_add_u32 v19, v18, 3, v19
    v_bfe_u32 v21, v9, 2, 1
    v_lshl_add_u32 v20, v21, 1, v20
    v_lshl_add_u32 v19, v20, 1, v19
    s_add_u32 s48, s48, 512
    v_add_u32 v155, s48, v19
    v_and_b32 v17, 7, v0
    v_min_u32 v17, 5, v17
    s_lshl_b32 s46, s33, 7
    s_add_u32 s46, s46, {FG}
    v_lshl_add_u32 v153, v17, 2, s46
    s_lshl_b32 s46, s28, 3
    v_add_u32 v17, s46, v11
    v_add_u32 v18, 2, v17
    v_lshlrev_b32 v19, 1, v9
    v_add_u32 v20, 1, v19
    v_cmp_le_u32_e64 s[60:61], v19, v17
    v_cmp_le_u32_e64 s[62:63], v20, v17
    v_cmp_le_u32_e64 s[64:65], v19, v18
    v_cmp_le_u32_e64 s[66:67], v20, v18
    v_cmp_lt_u32_e64 s[68:69], 7, v9
    s_mov_b32 s58, {f32(SCALE * LOG2E)}
    s_mul_i32 s46, s33, 12288
    s_mul_i32 s47, s28, 3072
    s_add_u32 s44, s46, s47
    s_add_u32 s44, s44, {QX}
    s_sub_u32 s47, s28, 1
    s_lshl_b32 s47, s47, 12
    s_add_u32 s45, s46, s47
    s_add_u32 s45, s45, {KX}
    s_add_u32 s52, s47, {KXB}
    s_mul_i32 s49, s28, 20480
    s_add_u32 s49, s49, {PX}
    ''')
    bell_poll_offs(A, 17, 0, 40, DBB)
    A('s_cmp_eq_u32 s28, 3\ns_cselect_b64 vcc, -1, 0\nv_cndmask_b32 v0, v152, v17, vcc')
    for k, r in PERS.items():
        A(f'v_mov_b32 {v(r)}, {v(k)}')
    gwait(A, 17, hot=True)
    A(f's_add_u32 s53, s53, s89\ns_mov_b32 s43, s53\ns_mov_b32 s40, s89')

    def dma():
        A('s_mov_b32 m0, s52')
        for i in range(4):
            A(f'buffer_load_dwordx4 v2, s[4:7], s45 offen offset:{1024 * i} sc1 lds')
        A(f's_add_u32 s45, s45, {QKV_S}')
    l = A.lab('k0')
    A(f's_cmp_eq_u32 s28, 0\ns_cbranch_scc1 {l}\ns_mov_b32 s50, 1')
    poll_block(A, 17, PERS[153], 's50')
    dma()
    A(f'{l}:\nv_mov_b32 v15, 0\ns_add_u32 s41, s40, 4096\ns_add_u32 s42, s40, {BLK}\ns_waitcnt vmcnt(0)\ns_barrier')
    A('Lqk_loop:')
    mark(A, 0)
    rpos = A.opts.get('ringa', 'x')

    def ring(p, shared=False):
        if p != rpos:
            return
        l = A.lab('rg')
        if shared:
            A(f's_cmp_lg_u32 s28, 0\ns_cbranch_scc1 {l}')
        A(f'v_mov_b32 v1, s50\nbuffer_store_dword v1, v0, s[4:7], s89 offen sc1\n{l}:')

    def hook(kind, t, f):
        if kind == 'top':
            for i in range(8):
                stage_read(A, i)
            for T in range(2):
                for z in range(2):
                    A(f'ds_read_b128 {v(80 + 8 * T + 4 * z, 4)}, v5 offset:{T * 6144 + z * 1024}')
            for r in range(56, 80):
                A(f'v_mov_b32 {v(r)}, 0')
            A('s_add_u32 s50, s24, 1')
        if kind == 'pre' and t == 8:
            for kb in (1, 2):
                for T in range(2):
                    for z in range(2):
                        A(f'ds_read_b128 {v(16 * kb + 8 * T + 4 * z, 4)}, v5 offset:{T * 6144 + kb * 2048 + z * 1024}')
        if kind == 'mf' and f == 52:
            A('s_waitcnt lgkmcnt(8)')
    ool = mem_phase(A, 'Lqk', 6, 56, hook)
    mark(A, 2)
    ring('m', True)
    for j in range(6):
        half_sum(A, 56 + 4 * j)
    for j in range(6):
        half_add(A, 56 + 4 * j)
    for m in range(3):
        d = 56 + 8 * m
        A(f'v_cvt_pk_bf16_f32 {v(d + 1)}, {v(d)}, {v(d + 4)}')
        A(f'v_cvt_pk_bf16_f32 {v(d + 3)}, {v(d + 2)}, {v(d + 6)}')
        A(f'ds_write_b32 {v(PERS[156 + m])}, {v(d + 1)}')
        A(f'ds_write_b32 {v(PERS[156 + m])}, {v(d + 3)} offset:32')
    ring('b', True)
    for r in range(132, 144):
        A(f'v_mov_b32 {v(r)}, 0')
    A('s_waitcnt lgkmcnt(0)\ns_barrier')
    mark(A, 3)
    lo, lj = A.lab('oth'), A.lab('join')
    for kb in range(3):
        A(f'ds_read_b128 {v(96 + 4 * kb, 4)}, v5 offset:{QB - KXB + kb * 1024}')
    for kb in range(3):
        for z in range(2):
            A(f'ds_read_b128 {v(108 + 8 * kb + 4 * z, 4)}, {v(PERS[159])} offset:{kb * 1024 + z * 512}')
    for kb in range(3):
        A(f'buffer_load_dwordx4 {v(56 + 4 * kb, 4)}, v2, s[4:7], s44 offen offset:{1024 * kb} sc1')
    A(f's_cmp_lg_u32 s28, 0\ns_cbranch_scc1 {lo}')
    ring('x')
    scores_softmax(A, 96, 132, False, 's43', ring)
    mark(A, 4)
    A(f's_waitcnt vmcnt({1 if rpos in "mb" else 2})\ns_branch {lj}\n{lo}:')
    li = A.lab('ini')
    slot4(A, 's46', 's24', 2, PP_S, 's53')
    A(f's_cmp_lg_u32 s28, 1\ns_cbranch_scc1 {li}')
    for r in range(144, 148):
        A(f'v_mov_b32 {v(r)}, -1')
    A(f'buffer_store_dwordx4 v[144:147], v6, s[4:7], s46 offen sc1\n{li}:')
    lf = A.lab('fl')
    A(f's_add_u32 s50, s24, 2\ns_min_u32 s50, s50, 64\nv_cmp_gt_u32 vcc, s50, v15\ns_cbranch_vccz {lf}')
    poll_block(A, 1, PERS[153], 's50')
    A(f'{lf}:')
    dma()
    A('s_waitcnt vmcnt(4)')
    A(f'{lj}:')
    for r in range(68, 80):
        A(f'v_mov_b32 {v(r)}, 0')
    scores_softmax(A, 56, 68, True, 's49')
    mark(A, 5)
    A(f'''
    buffer_load_dword v15, {v(PERS[153])}, s[4:7], 0 offen sc1
    s_add_u32 s44, s44, {QKV_S}
    s_add_u32 s49, s49, {PX_S}
    s_add_u32 s24, s24, 1
    ''')
    slot4(A, 's40', 's24', 0, MM_S, 's89')
    slot4(A, 's43', 's24', 0, PP_S, 's53')
    A(f'''
    s_add_u32 s41, s40, 4096
    s_add_u32 s42, s40, {BLK}
    s_cmp_eq_u32 s24, 64
    s_cbranch_scc1 Lqk_fin
    ''')
    pflush(A, 16)
    A('s_cmp_lg_u32 s28, 3\ns_cbranch_scc1 Lqk_open')
    gate(A, 'Lqk', 0, 's24')
    A(f's_waitcnt vmcnt({4 if pon(A) else 2})')
    mark(A, 6)
    A(f'''
    s_barrier
    s_branch Lqk_loop
    Lqk_fin:
    ''')
    pflush(A, 16)
    A(f'''
    s_waitcnt vmcnt(0)
    s_barrier
    s_cmp_lg_u32 s28, 1
    s_cbranch_scc1 Lexit
    v_mov_b32 v144, 0
    v_mov_b32 v145, 0
    v_mov_b32 v146, 0
    v_mov_b32 v147, 0
    buffer_store_dwordx4 v[144:147], v6, s[4:7], s43 offen sc1
    s_endpgm
    ''')
    ool()


def role_vum(A):
    A('Lvum:')
    srd(A, 8, 32, 7864320)
    srd(A, 12, 40, 7864320)
    A('''
    s_lshl_b32 s33, s26, 3
    s_add_u32 s33, s33, s27
    s_sub_u32 s33, s33, 8
    ''')
    common_lane(A)
    A(f'''
    s_mul_i32 s46, s28, 48
    v_mul_u32_u24 v16, 3, v9
    v_add_u32 v16, s46, v16
    v_lshlrev_b32 v17, 1, v16
    v_and_b32 v17, -4, v17
    s_mul_i32 s47, s33, 384
    v_mul_u32_u24 v6, 12288, v8
    v_add3_u32 v6, v6, v17, s47
    s_mul_i32 s47, s33, 245760
    s_mul_i32 s48, s28, 320
    s_add_u32 s47, s47, s48
    v_mul_u32_u24 v7, 1280, v8
    v_lshlrev_b32 v17, 2, v9
    v_add3_u32 v7, v7, v17, s47
    v_lshrrev_b32 v17, 3, v9
    v_lshlrev_b32 v17, 14, v17
    v_and_b32 v18, 7, v9
    v_lshl_add_u32 v17, v18, 4, v17
    v_lshrrev_b32 v18, 1, v10
    v_lshl_add_u32 v17, v18, 7, v17
    v_and_b32 v18, 1, v10
    v_lshl_add_u32 v5, v18, 15, v17
    v_mov_b32 v1, {OOB}
    v_cmp_eq_u32 vcc, 0, v18
    v_cndmask_b32 v159, v1, v5, vcc
    s_lshl_b32 s43, s33, 8
    s_mul_i32 s46, s28, {10 * BLK}
    s_add_u32 s53, s43, s46
    s_add_u32 s43, s53, s88
    ''')
    for k in range(2):
        for hf in range(2):
            for pr in (0, 2, 4):
                A(f's_add_u32 s46, s43, {k * UM_S + pr * 2 * BLK + hf * 8192}')
                A(f'buffer_store_dwordx4 v[12:15], {"v5" if pr < 4 else "v159"}, s[4:7], s46 offen sc1')
    A('s_add_u32 s47, s33, 32')
    bell_offs(A, 155, 's47', DBA)
    bell_poll_offs(A, 154, 0, 40, DBB)
    for j in range(3):
        A(f'''
        v_add_u32 v17, {j}, v16
        v_lshrrev_b32 v18, 3, v17
        v_lshlrev_b32 v18, 7, v18
        v_and_b32 v17, 7, v17
        v_lshl_add_u32 v17, v17, 1, v18
        v_lshl_add_u32 v17, v11, 4, v17
        v_add_u32 {v(156 + j)}, {VB}, v17
        ''')
    A('''
    v_and_b32 v17, 1, v9
    v_cmp_eq_u32_e64 s[60:61], 1, v17
    v_mov_b32 v0, s29
    v_mov_b32 v8, s30
    v_cndmask_b32_e64 v17, v0, v8, s[60:61]
    v_cndmask_b32_e64 v8, v8, v0, s[60:61]
    v_mov_b32 v0, v17
    ''')
    srd_fin(A, 8, 12)
    so = SOff(A)
    sink = FragSink(A)
    groups = []
    for t in range(10):
        for z in range(2):
            def issue(slot, t=t, z=z):
                for e in range(8):
                    A(f'buffer_load_dwordx2 {v(16 + 16 * slot + 2 * e, 2)}, v6, s[8:11], {so.at((64 * t + 32 * z + ROWP[e]) * 12288)}')

            def post(slot, t=t, z=z):
                b = 16 + 16 * slot
                sink.quad(3 * t, z, [(v(b + 4 * q + 2), v(b + 4 * q), 'v0') for q in range(4)])
                sink.quad(3 * t + 2, z, [(v(b + 4 * q + 3), v(b + 4 * q + 1), 'v0') for q in range(4)])
                for e in range(8):
                    A(f'v_cndmask_b32_e64 {v(b + 2 * e)}, {v(b + 2 * e)}, {v(b + 2 * e + 1)}, s[60:61]')
                sink.quad(3 * t + 1, z, [(v(b + 4 * q + 2), v(b + 4 * q), 'v8') for q in range(4)])
            groups.append((8, issue, post))
    for pr in range(5):
        for kb in range(3):
            for z in range(2):
                def issue(slot, pr=pr, kb=kb, z=z):
                    for e in range(8):
                        A(f'buffer_load_dword {v(16 + 16 * slot + e)}, v7, s[12:15], {so.at((64 * kb + 32 * z + ROWP[e]) * 1280 + pr * 64)}')

                def post(slot, pr=pr, kb=kb, z=z):
                    b = 16 + 16 * slot
                    for T in range(2):
                        sink.quad(30 + 6 * pr + 2 * kb + T, z, [(v(b + 2 * q + 1), v(b + 2 * q), ('s29', 's30')[T]) for q in range(4)])
                groups.append((8, issue, post))
    run_loader(A, groups, 8, between=lambda n: arrive(A, min(n, 63), 1))
    A(f'''
    v_mov_b32 v8, -1
    v_mov_b32 v9, -1
    v_mov_b32 v10, -1
    v_mov_b32 v11, -1
    v_mov_b32 v12, v159
    v_mov_b32 v13, v156
    v_mov_b32 v14, v157
    v_mov_b32 v15, v158
    v_mov_b32 v0, v155
    v_mov_b32 v7, v154
    v_add_u32 v6, {VB}, v2
    ''')
    gwait(A, 17, hot=True)
    A(f's_add_u32 s43, s53, s88\ns_add_u32 s54, s43, {2 * UM_S}\ns_mov_b32 s53, s54')
    A('Lvum_loop:')
    mark(A, 0)
    for i in range(8):
        stage_read(A, i)
    for r in range(56, 68):
        A(f'v_mov_b32 {v(r)}, 0')
    slot4(A, 's40', 's24', 0, MM_S, 's89')
    A(f's_add_u32 s41, s40, 4096\ns_add_u32 s42, s40, {BLK}')
    A('s_add_u32 s50, s24, 1\ns_cmp_lg_u32 s28, 3\ns_cbranch_scc1 Lvum_open')
    gate(A, 'Lvum', 7, 's24')
    A('s_barrier')
    mark(A, 5)
    ool = mem_phase(A, 'Lvum', 3, 56, lambda *x: None)
    mark(A, 2)
    rpos = int(A.opts.get('ringv', 1))

    def ring(p):
        if p == rpos:
            A('v_mov_b32 v1, s50\nbuffer_store_dword v1, v0, s[4:7], s89 offen sc1')
    ring(-2)
    for j in range(3):
        half_sum(A, 56 + 4 * j)
    for j in range(3):
        half_add(A, 56 + 4 * j)
    for j in range(3):
        d = 56 + 4 * j
        A(f'v_cvt_pk_bf16_f32 {v(d + 1)}, {v(d)}, {v(d + 2)}')
        A(f'ds_write_b16 {v(13 + j)}, {v(d + 1)}')
        A(f'ds_write_b16_d16_hi {v(13 + j)}, {v(d + 1)} offset:32')
    ring(-1)
    for r in range(16, 36):
        A(f'v_mov_b32 {v(r)}, 0')
    A('s_waitcnt lgkmcnt(0)\ns_barrier')
    mark(A, 3)
    for kb in range(3):
        A(f'ds_read_b128 {v(68 + 4 * kb, 4)}, v6 offset:{kb * 1024}')
    for r in range(36, 56):
        A(f'v_mov_b32 {v(r)}, 0')

    def red(pr):
        d0, d1 = 16 + 8 * pr, 20 + 8 * pr
        o = [f'v_permlane32_swap_b32 {v(d0 + r)}, {v(d1 + r)}' for r in range(4)]
        o += [f'v_pk_add_f32 {v(d0 + r, 2)}, {v(d0 + r, 2)}, {v(d1 + r, 2)}' for r in (0, 2)]
        x = d1 if pr % 2 == 0 else d1 - 8
        for y in ([x] if pr in (0, 2) else [x + 2] if pr % 2 else [x, x + 2]):
            o += [f'v_cvt_pk_bf16_f32 {v(y)}, {v(d0)}, {v(d0 + 1)}', f'v_cvt_pk_bf16_f32 {v(y + 1)}, {v(d0 + 2)}, {v(d0 + 3)}']
        if pr not in (0, 2):
            o += [f'v_permlane16_swap_b32 {v(x)}, {v(x + 2)}', f'v_permlane16_swap_b32 {v(x + 1)}, {v(x + 3)}']
            o += [f's_add_u32 s46, s43, {(pr & ~1) * 2 * BLK}\nbuffer_store_dwordx4 {v(x, 4)}, {"v5" if pr < 4 else "v12"}, s[4:7], s46 offen sc1']
        return o
    for pr in range(5):
        pend = red(pr - 1) if pr else []
        ring(pr)
        for kb in range(3):
            if pr == 0:
                A(f's_waitcnt lgkmcnt({2 - kb})')
            for T in range(2):
                A(f'{SM} {v(16 + 8 * pr + 4 * T, 4)}, {v(68 + 4 * kb, 4)}, {fname(30 + 6 * pr + 2 * kb + T)}, v4')
                if 2 * kb + T >= 2:
                    for _ in range(3):
                        if pend:
                            A(pend.pop(0))
        assert not pend
    A(*red(4))
    mark(A, 4)
    pflush(A, 56)
    for pr in (0, 2, 4):
        A(f's_add_u32 s46, s54, {pr * 2 * BLK}')
        A(f'buffer_store_dwordx4 v[8:11], {"v5" if pr < 4 else "v12"}, s[4:7], s46 offen sc1')
    A(f'''
    s_mov_b32 s54, s43
    s_cmp_eq_u32 s43, s53
    s_cselect_b32 s46, {3 * UM_S}, 0
    s_add_u32 s43, s43, {UM_S}
    s_sub_u32 s43, s43, s46
    s_add_u32 s24, s24, 1
    s_cmp_lt_u32 s24, 64
    s_cbranch_scc1 Lvum_loop
    s_endpgm
    ''')
    ool()


def pack_rows(A, D, t):
    half_sum(A, D)
    half_add(A, D)
    A(f'v_mov_b32 {v(t)}, {v(D)}')
    A(f'v_mov_b32_dpp {v(D)}, {v(D + 2)} row_ror:8 row_mask:0xf bank_mask:0xc')
    A(f'v_mov_b32_dpp {v(D + 2)}, {v(t)} row_ror:8 row_mask:0xf bank_mask:0x3')


def bf16_round(A, r):
    A(f'v_cvt_pk_bf16_f32 {v(r)}, {v(r)}, {v(r)}')
    A(f'v_and_b32 {v(r)}, 0xffff0000, {v(r)}')


def oct_sum(A, r):
    A(f'v_add_f32_dpp {v(r)}, {v(r)}, {v(r)} quad_perm:[1,0,3,2] row_mask:0xf bank_mask:0xf')
    A(f'v_add_f32_dpp {v(r)}, {v(r)}, {v(r)} quad_perm:[2,3,0,1] row_mask:0xf bank_mask:0xf')
    A(f'v_add_f32_dpp {v(r)}, {v(r)}, {v(r)} row_half_mirror row_mask:0xf bank_mask:0xf')


def layernorm(A):
    A('s_mul_i32 s46, s34, 40960')
    for m in range(10):
        A(f'buffer_load_dwordx4 {v(20 + 4 * m, 4)}, v16, s[8:11], s46 offen offset:{128 * m}')
    for m in range(10):
        A(f's_waitcnt vmcnt({9 - m})')
        for q in range(4):
            A(f'v_lshlrev_b32 {v(64 + 8 * m + 2 * q)}, 16, {v(20 + 4 * m + q)}')
            A(f'v_and_b32 {v(65 + 8 * m + 2 * q)}, 0xffff0000, {v(20 + 4 * m + q)}')
    A('v_pk_add_f32 v[18:19], v[64:65], v[66:67]')
    for k in range(2, 40):
        A(f'v_pk_add_f32 v[18:19], v[18:19], {v(64 + 2 * k, 2)}')
    A('v_add_f32 v18, v18, v19')
    oct_sum(A, 18)
    A(f'v_mul_f32 v18, {f32(1 / 640)}, v18')
    A('v_mov_b32 v60, 0\nv_mov_b32 v61, 0')
    for k in range(80):
        A(f'v_sub_f32 {v(62 + (k & 1))}, {v(64 + k)}, v18')
        A(f'v_fmac_f32 {v(60 + (k & 1))}, {v(62 + (k & 1))}, {v(62 + (k & 1))}')
    A('v_add_f32 v60, v60, v61')
    oct_sum(A, 60)
    A(f'v_mul_f32 v60, {f32(1 / 640)}, v60')
    bf16_round(A, 18)
    bf16_round(A, 60)
    A(f'v_add_f32 v60, {f32(1e-5)}, v60')
    bf16_round(A, 60)
    A('v_sqrt_f32 v60, v60')
    bf16_round(A, 60)
    A('v_rcp_f32 v60, v60')
    A(f's_add_u32 s46, s46, {XN}')
    for m in range(10):
        for q in range(4):
            r = 64 + 8 * m + 2 * q
            A(f'v_sub_f32 {v(r)}, {v(r)}, v18\nv_sub_f32 {v(r + 1)}, {v(r + 1)}, v18')
            A(f'v_cvt_pk_bf16_f32 {v(r)}, {v(r)}, {v(r + 1)}')
            A(f'v_and_b32 {v(r + 1)}, 0xffff0000, {v(r)}\nv_lshlrev_b32 {v(r)}, 16, {v(r)}')
            A(f'v_mul_f32 {v(r)}, {v(r)}, v60\nv_mul_f32 {v(r + 1)}, {v(r + 1)}, v60')
            A(f'v_cvt_pk_bf16_f32 {v(20 + 4 * m + q)}, {v(r)}, {v(r + 1)}')
        A(f'buffer_store_dwordx4 {v(20 + 4 * m, 4)}, v17, s[4:7], s46 offen sc1')
        A('s_add_u32 s46, s46, 4096')


def p_loads(A, px, pm, sreg, ops):
    for b in range(4):
        for u in range(2):
            A(f'buffer_load_dwordx2 {v(pm + 4 * b + 2 * u, 2)}, v6, s[4:7], {s(sreg + b)} offen offset:{640 * u} sc1')
    k = 0
    for b in range(8):
        for op in ops:
            A(f'buffer_load_dwordx4 {v(px + 4 * k, 4)}, v5, s[4:7], {s(sreg + b // 2)} offen offset:{(b % 2) * 2560 + op * 256} sc1')
            k += 1


def role_pu(A):
    A('Lpu:')
    srd(A, 8, 0, 2621440)
    srd(A, 12, 88, 2621440)
    srd(A, 16, 8, 10240)
    A('''
    s_mul_i32 s33, s26, 10
    s_add_u32 s33, s33, s27
    s_sub_u32 s33, s33, 16
    s_cmp_ge_u32 s33, 32
    s_cselect_b32 s55, 8192, 0
    s_lshl_b32 s46, s33, 8
    s_add_u32 s55, s55, s46
    ''')
    common_lane(A)
    A(f'''
    v_lshrrev_b32 v18, 3, v0
    s_lshl_b32 s46, s28, 3
    v_add_u32 v18, s46, v18
    v_and_b32 v19, 7, v0
    v_mul_u32_u24 v16, 1280, v18
    v_lshl_add_u32 v16, v19, 4, v16
    v_lshlrev_b32 v17, 4, v18
    v_and_b32 v20, 1, v19
    v_lshl_add_u32 v17, v20, 9, v17
    v_lshrrev_b32 v20, 1, v19
    v_lshl_add_u32 v17, v20, 10, v17
    v_mul_u32_u24 v5, 640, v10
    v_lshl_add_u32 v5, v9, 4, v5
    v_mul_u32_u24 v6, 1280, v10
    v_lshl_add_u32 v6, v9, 3, v6
    v_add_u32 v6, 512, v6
    v_lshrrev_b32 v20, 3, v9
    v_lshl_add_u32 v11, v20, 1, v11
    v_and_b32 v8, 7, v9
    v_lshrrev_b32 v20, 1, v10
    v_lshlrev_b32 v20, 10, v20
    v_and_b32 v21, 1, v10
    v_lshl_add_u32 v20, v21, 8, v20
    v_lshl_add_u32 v3, v9, 4, v20
    s_mov_b32 s34, s33
    ''')
    srd_fin(A, 8, 12, 16)
    bell_offs(A, 200, 's33', DBB)
    bell_poll_offs(A, 201, 0, 64, DBA)
    l = A.lab('m0')
    A(f'''
    s_cmp_lg_u32 s28, 0
    s_cbranch_scc1 {l}
    v_and_b32 v20, 7, v0
    v_mul_u32_u24 v20, 1280, v20
    v_lshrrev_b32 v21, 3, v0
    v_lshl_add_u32 v20, v21, 4, v20
    s_lshl_b32 s46, s33, 5
    v_add_u32 v20, s46, v20
    v_add_u32 v21, s55, v2
    v_mov_b32 v1, {OOB}
    v_cmp_gt_u32 vcc, 16, v0
    v_cndmask_b32 v20, v1, v20, vcc
    v_cndmask_b32 v21, v1, v21, vcc
    buffer_load_dwordx4 v[24:27], v20, s[16:19], 0 offen
    s_add_u32 s46, s89, {MM_S}
    s_add_u32 s47, s89, {2 * MM_S}
    buffer_store_dwordx4 v[12:15], v21, s[4:7], s46 offen sc1
    buffer_store_dwordx4 v[12:15], v21, s[4:7], s47 offen sc1
    s_add_u32 s46, s89, {MM_S + 8192}
    s_add_u32 s47, s89, {2 * MM_S + 8192}
    s_add_u32 s48, s89, 8192
    buffer_store_dwordx4 v[12:15], v21, s[4:7], s46 offen sc1
    buffer_store_dwordx4 v[12:15], v21, s[4:7], s47 offen sc1
    s_waitcnt vmcnt(4)
    buffer_store_dwordx4 v[24:27], v21, s[4:7], s89 offen sc1
    buffer_store_dwordx4 v[24:27], v21, s[4:7], s48 offen sc1
    {l}:
    Lpu_ln:
    ''')
    layernorm(A)
    A('''
    s_add_u32 s34, s34, 40
    s_cmp_lt_u32 s34, 64
    s_cbranch_scc1 Lpu_ln
    ''')
    arrive(A, 0, 1)
    gwait(A, 18, hot=True)
    A('s_cmp_lg_u32 s28, 0\ns_cbranch_scc1 Lpux')
    A(f'''
    v_lshrrev_b32 v16, 2, v8
    v_lshlrev_b32 v16, 7, v16
    v_lshl_add_u32 v16, v11, 4, v16
    v_and_b32 v17, 3, v9
    v_lshl_add_u32 v16, v17, 2, v16
    v_add_u32 v7, s55, v16
    v_mov_b32 v1, {OOB}
    v_cmp_eq_u32 vcc, 0, v17
    v_cndmask_b32 v7, v1, v7, vcc
    v_and_b32 v16, 7, v0
    v_bfe_u32 v17, v0, 3, 2
    v_lshlrev_b32 v17, 14, v17
    v_mul_u32_u24 v0, 640, v16
    v_add_u32 v0, v0, v17
    v_mov_b32 v136, -1
    v_mov_b32 v137, -1
    v_mov_b32 v138, -1
    v_mov_b32 v139, -1
    v_mov_b32 v132, v3
    v_add_u32 v133, 32768, v2
    s_add_u32 s53, s89, {PP}
    s_mov_b32 s40, s53
    s_lshl_b32 s44, s33, 14
    s_add_u32 s44, s44, s88
    s_add_u32 s54, s44, {2 * UM_S}
    s_mov_b32 s48, 0
    s_barrier
    Lpu0_loop:
    v_add_u32 v3, s48, v132
    v_add_u32 v131, s48, v133
    ''')
    mark(A, 0)
    for b in range(8):
        for op in range(2):
            for z in range(2):
                A(f'ds_read_b128 {a(8 * (2 * b + op) + 4 * z, 4)}, v3 offset:{(4 * b + 2 * z) * 1024 + op * 512}')
    A(f'''
    s_add_u32 s41, s40, {BLK}
    s_add_u32 s42, s40, {2 * BLK}
    s_add_u32 s43, s40, {3 * BLK}
    s_add_u32 s45, s44, 4096
    s_add_u32 s52, s24, 1
    v_mov_b32 v135, s52
    ''')
    slot4(A, 's46', 's24', 1, MM_S, 's89')
    slot4(A, 's47', 's24', 3, MM_S, 's89')
    gate(A, 'Lpu0', 201, 's52')
    mark(A, 1)
    rpos = int(A.opts.get('ringb', 0))
    RING = 'buffer_store_dword v135, v200, s[4:7], s89 offen sc1'
    if rpos == -1:
        A(RING)
    A('Lpu0_try:')
    for k in range(8):
        A(f'buffer_load_dwordx4 {v(96 + 4 * k, 4)}, v2, s[4:7], {s(44 + k // 4)} offen offset:{1024 * (k % 4)} sc1')
    p_loads(A, 16, 80, 40, (0, 1))
    for r in range(8, 12):
        A(f'v_mov_b32 {v(r)}, 0')
    A('v_mov_b32 v128, 0\nv_mov_b32 v129, 0\ns_waitcnt lgkmcnt(0)')
    for k in range(20):
        if k < 4:
            Af, Bf, cnt = 80 + 4 * k, v(96 + 8 * k, 8), 22 - 2 * k
        else:
            Af, Bf, cnt = 16 + 4 * (k - 4), a(8 * (k - 4), 8), 19 - k
        A(f's_waitcnt vmcnt({cnt + (1 if 0 <= rpos < k else 0)})')
        if k == rpos:
            A(RING)
            mark(A, 5)
        A(f'{SM} v[8:11], {v(Af, 4)}, {Bf}, v4')
        A(f'v_or3_b32 v128, v128, {v(Af)}, {v(Af + 1)}')
        A(f'v_or3_b32 v128, v128, {v(Af + 2)}, {v(Af + 3)}')
        if 4 <= k < 12:
            u = 96 + 4 * (k - 4)
            A(f'v_max3_u32 v129, v129, {v(u)}, {v(u + 2)}')
        if k == 12:
            A('v_cmp_eq_u32_e64 s[50:51], -1, v129')
    A('''
    v_and_b32 v128, 0x80008000, v128
    v_cmp_ne_u32 vcc, 0, v128
    s_or_b64 vcc, vcc, s[50:51]
    s_cbranch_scc1 Lpu0_retry
    Lpu0_ok:
    ''')
    mark(A, 2)
    pack_rows(A, 8, 12)
    A('''
    v_cvt_pk_bf16_f32 v8, v8, v10
    v_mov_b32_dpp v9, v8 quad_perm:[1,1,1,1] row_mask:0xf bank_mask:0xf
    v_mov_b32_dpp v10, v8 quad_perm:[2,2,2,2] row_mask:0xf bank_mask:0xf
    v_mov_b32_dpp v11, v8 quad_perm:[3,3,3,3] row_mask:0xf bank_mask:0xf
    buffer_store_dwordx4 v[8:11], v7, s[4:7], s46 offen sc1
    buffer_store_dwordx4 v[136:139], v7, s[4:7], s47 offen sc1
    ''')
    mark(A, 3)
    for k in range(8):
        A(f'ds_write_b128 v131, {v(96 + 4 * k, 4)} offset:{1024 * k}')
    A(f'''
    s_cmp_eq_u32 s44, s54
    s_cselect_b32 s46, {3 * UM_S}, 0
    s_add_u32 s44, s44, {UM_S}
    s_sub_u32 s44, s44, s46
    s_add_u32 s48, s48, 40960
    s_cmp_eq_u32 s48, 163840
    s_cselect_b32 s48, 0, s48
    s_add_u32 s24, s24, 1
    ''')
    slot4(A, 's40', 's24', 0, PP_S, 's53')
    A('s_waitcnt lgkmcnt(0)\ns_barrier')
    mark(A, 4)
    pflush(A, 144)
    A(f'''
    s_cmp_lt_u32 s24, 64
    s_cbranch_scc1 Lpu0_loop
    Lpu0_fin:
    buffer_load_dword v1, v0, s[4:7], s40 offen offset:512 sc1
    s_waitcnt vmcnt(0)
    v_and_b32 v1, 0x80008000, v1
    v_cmp_ne_u32 vcc, 0, v1
    s_cbranch_vccz Lpu0_end
    ''')
    retry(A, 'Lpu0_fin', 'Lpu0_end')
    A('Lpu0_end:\ns_barrier\ns_endpgm\nLpu0_retry:')
    retry(A, 'Lpu0_try', 'Lpu0_ok')
    A(f'''
    Lpux:
    s_lshr_b32 s46, s33, 3
    s_sub_u32 s47, s33, 32
    s_lshr_b32 s47, s47, 2
    s_lshl_b32 s47, s47, 1
    s_add_u32 s48, s47, 1
    s_cmp_lt_u32 s33, 32
    s_cselect_b32 s47, s46, s47
    s_cselect_b32 s48, s46, s48
    s_lshl_b32 s47, s47, 7
    s_lshl_b32 s48, s48, 7
    v_mov_b32 v16, s47
    v_mov_b32 v17, s48
    v_cmp_gt_u32 vcc, 32, v0
    v_cndmask_b32 v16, v17, v16, vcc
    v_and_b32 v17, 31, v0
    v_lshl_add_u32 v16, v17, 2, v16
    v_add_u32 v160, {FU}, v16
    s_lshl_b32 s46, s33, 2
    s_add_u32 s46, s46, {FF2}
    v_mov_b32 v161, s46
    v_mul_u32_u24 v7, 1280, v11
    v_lshl_add_u32 v7, v8, 2, v7
    s_lshl_b32 s46, s33, 5
    v_add_u32 v7, s46, v7
    v_lshlrev_b32 v162, 5, v11
    v_lshl_add_u32 v162, v8, 2, v162
    v_mov_b32 v163, v3
    v_add_u32 v164, 32768, v2
    s_cmp_eq_u32 s28, 1
    s_cselect_b32 s35, 0, s28
    s_mul_i32 s40, s35, 20480
    s_add_u32 s40, s40, {PX}
    s_mul_i32 s49, s35, 10240
    s_lshl_b32 s51, s35, 8
    s_lshl_b32 s46, s33, 10
    s_add_u32 s51, s51, s46
    s_add_u32 s51, s51, {GG}
    s_cmp_eq_u32 s28, 2
    s_cselect_b32 s36, 10240, 0
    s_cmp_eq_u32 s28, 3
    s_cselect_b32 s36, 21504, s36
    s_lshl_b32 s44, s33, 15
    s_add_u32 s44, s44, s36
    s_add_u32 s44, s44, {UX}
    s_mov_b32 s45, 0
    s_mov_b32 s48, 0
    ''')

    def dma():
        A('s_add_u32 s46, s45, s36')
        for m in range(3):
            A(f's_add_u32 m0, s46, {4096 * m}')
            A(f's_add_u32 s47, s44, {4096 * m}')
            for i in range(4 if m < 2 else 3):
                A(f'buffer_load_dwordx4 v2, s[4:7], s47 offen offset:{1024 * i} sc1 lds')
        A(f'''
        s_add_u32 s44, s44, {UX_S}
        s_add_u32 s45, s45, 40960
        s_cmp_eq_u32 s45, 163840
        s_cselect_b32 s45, 0, s45
        ''')
    A('s_mov_b32 s50, 1\nLpux_pro:')
    poll_block(A, 1, 160, 's50')
    dma()
    A('''
    s_add_u32 s50, s50, 1
    s_waitcnt vmcnt(0)
    s_barrier
    s_cmp_lt_u32 s50, 4
    s_cbranch_scc1 Lpux_pro
    v_mov_b32 v176, 0
    v_mov_b32 v177, 0
    s_cmp_eq_u32 s28, 1
    s_cbranch_scc1 Lpux1_loop
    ''')

    def xloop(L, two):
        ng = 2 if two else 1
        ops = (0,) if two else (0, 1)
        A(f'''
        {L}_loop:
        s_add_u32 s50, s24, 1
        ''')
        mark(A, 0)
        l1, l2 = A.lab('fa'), A.lab('fb')
        A(f's_waitcnt vmcnt(0)\nv_cmp_gt_u32 vcc, s50, v176\ns_cbranch_vccz {l1}')
        poll_block(A, 1, 161, 's50')
        A(f'{l1}:')
        mark(A, 1)
        A('s_add_u32 s50, s24, 4\ns_min_u32 s50, s50, 64')
        A(f'v_cmp_gt_u32 vcc, s50, v177\ns_cbranch_vccz {l2}')
        poll_block(A, 1, 160, 's50')
        A(f'{l2}:')
        mark(A, 2)
        A('''
        s_add_u32 s41, s40, 5120
        s_add_u32 s42, s40, 10240
        s_add_u32 s43, s40, 15360
        v_add_u32 v3, s48, v163
        v_add_u32 v0, s48, v164
        ''')
        blocks = [('m', b) for b in range(4)] + [('x', b, op) for b in range(8) for op in ops]

        def bread(k):
            bl = blocks[k]
            for z in range(2):
                d = v(112 + 8 * (k % 6) + 4 * z, 4)
                if bl[0] == 'm':
                    A(f'ds_read_b128 {d}, v0 offset:{(2 * bl[1] + z) * 1024}')
                else:
                    A(f'ds_read_b128 {d}, v3 offset:{(4 * bl[1] + 2 * z) * 1024 + bl[2] * 512}')
        p_loads(A, 16, 80, 40, ops)
        if two:
            for k in range(4):
                A(f's_add_u32 {s(52 + k)}, {s(40 + k)}, 20480')
            p_loads(A, 48, 96, 52, ops)
        for g in range(ng):
            A(f's_add_u32 s46, s49, {10240 * g}')
            A(f'buffer_load_dword {v(166 + g)}, v7, s[8:11], s46 offen')
            A(f'buffer_load_dword {v(168 + g)}, v162, s[4:7], s51 offen offset:{256 * g} sc1')
        dma()
        for k in range(6):
            bread(k)
        for r in range(8, 16):
            A(f'v_mov_b32 {v(r)}, 0')
        A('s_waitcnt vmcnt(11)')
        mark(A, 3)
        n = len(blocks)
        for k in range(n):
            A(f's_waitcnt lgkmcnt({2 * min(5, n - 1 - k)})')
            B = v(112 + 8 * (k % 6), 8)
            for g in range(ng):
                Af = (80 + 16 * g + 4 * k) if k < 4 else (16 + 32 * g + 4 * (k - 4))
                D = 8 + 4 * (g if two else (k & 1))
                A(f'{SM} {v(D, 4)}, {v(Af, 4)}, {B}, v4')
            if k + 6 < n:
                bread(k + 6)
        if not two:
            A('v_pk_add_f32 v[8:9], v[8:9], v[12:13]\nv_pk_add_f32 v[10:11], v[10:11], v[14:15]')
        for g in range(ng):
            D = 8 + 4 * g
            pack_rows(A, D, 170)
            A(f'''
            v_cvt_pk_bf16_f32 v170, {v(D)}, {v(D + 2)}
            v_lshlrev_b32 v171, 16, v170
            v_and_b32 v170, 0xffff0000, v170
            v_lshlrev_b32 v172, 16, {v(168 + g)}
            v_and_b32 v173, 0xffff0000, {v(168 + g)}
            v_mul_f32 v171, v171, v172
            v_mul_f32 v170, v170, v173
            v_cvt_pk_bf16_f32 v170, v171, v170
            v_lshlrev_b32 v171, 16, v170
            v_and_b32 v170, 0xffff0000, v170
            v_lshlrev_b32 v172, 16, {v(166 + g)}
            v_and_b32 v173, 0xffff0000, {v(166 + g)}
            v_add_f32 v171, v171, v172
            v_add_f32 v170, v170, v173
            v_cvt_pk_bf16_f32 {v(174 + g)}, v171, v170
            s_add_u32 s46, s49, {10240 * g}
            buffer_store_dword {v(174 + g)}, v7, s[12:15], s46 offen
            ''')
        le = A.lab('xe')
        mark(A, 4)
        if pon(A):
            A('s_waitcnt vmcnt(0)')
        mark(A, 5)
        pflush(A, 16)
        A(f'''
        s_add_u32 s40, s40, {PX_S}
        s_add_u32 s49, s49, 40960
        s_add_u32 s51, s51, {GG_S}
        s_add_u32 s48, s48, 40960
        s_cmp_eq_u32 s48, 163840
        s_cselect_b32 s48, 0, s48
        s_add_u32 s24, s24, 1
        s_cmp_eq_u32 s24, 64
        s_cbranch_scc1 {le}
        buffer_load_dword v176, v161, s[4:7], 0 offen sc1
        buffer_load_dword v177, v160, s[4:7], 0 offen sc1
        s_waitcnt vmcnt({ng + 2})
        s_barrier
        s_branch {L}_loop
        {le}:
        s_waitcnt vmcnt(0)
        s_endpgm
        ''')
    xloop('Lpux2', False)
    xloop('Lpux1', True)
```

```python
import os
import sys
sys.path.insert(0, os.path.dirname(os.path.abspath(__file__)))
from asmlib import Asm, pad_hazards, v, a, s
from layout import *
import roles_bulk as RB
import roles_rec as RR

NAME = 'recurrent_scan__memory_aug_recurrent_mem_tr__swiglu_ffn__prompt'


def build(opts):
    A = Asm()
    A.opts = opts
    A(f'''
    s_cmp_ge_u32 s2, 256
    s_cbranch_scc1 Lexit
    s_load_dwordx2 s[4:5], s[0:1], 104
    s_load_dwordx2 s[20:21], s[0:1], 96
    s_and_b32 s26, s2, 7
    s_lshr_b32 s27, s2, 3
    v_lshrrev_b32 v1, 6, v0
    v_and_b32 v0, 63, v0
    v_readfirstlane_b32 s28, v1
    s_mov_b32 s6, {WS_BYTES}
    s_mov_b32 s7, 0x20000
    s_mov_b32 s22, 256
    s_mov_b32 s23, 0x20000
    s_mov_b32 s25, {BUDGET}
    s_mov_b32 s29, 0x05040100
    s_mov_b32 s30, 0x07060302
    s_mov_b32 s24, 0
    {'s_memrealtime s[70:71]' if opts.get('prof') == '1' else ''}
    s_waitcnt lgkmcnt(0)
    s_and_b32 s5, s5, 0xffff
    s_and_b32 s21, s21, 0xffff
    s_add_u32 s88, s4, {65536 + PAGE - 1}
    s_and_b32 s88, s88, {(-PAGE) & 0xffffffff}
    s_sub_u32 s88, s88, s4
    s_add_u32 s89, s88, {PAGE}
    s_cmp_ge_u32 s26, 4
    s_cbranch_scc1 Lbulk
    s_cmp_lt_u32 s27, 8
    s_cbranch_scc1 Lqk
    s_cmp_lt_u32 s27, 16
    s_cbranch_scc1 Lvum
    s_cmp_lt_u32 s27, 26
    s_cbranch_scc1 Lpu
    s_cmp_eq_u32 s2, {26 * 8}
    s_cbranch_scc1 Lcal
    s_endpgm
    Lbulk:
    s_sub_u32 s26, s26, 4
    s_cmp_lt_u32 s27, 18
    s_cbranch_scc1 Lg1
    s_cmp_lt_u32 s27, 26
    s_cbranch_scc1 Lu
    s_sub_u32 s32, s27, 26
    s_lshl_b32 s32, s32, 2
    s_add_u32 s32, s32, s26
    s_cmp_lt_u32 s32, 12
    s_cbranch_scc1 Lf1
    s_cmp_lt_u32 s32, 22
    s_cbranch_scc1 Lf2
    Lexit:
    s_endpgm
    ''')
    RR.role_cal(A)
    RR.role_qk(A)
    RR.role_vum(A)
    RR.role_pu(A)
    RB.role_g1(A, False)
    RB.role_u(A)
    RB.role_g1(A, True)
    RB.role_f2(A)
    lines, nops = pad_hazards(A.l)
    hdr = open(os.path.join(os.path.dirname(os.path.abspath(__file__)), '..', 'cdna_kernels', NAME + '.s.ref')).read().split('\n')
    top = []
    for l in hdr:
        if l.startswith('; @launch'):
            break
        top.append(l)
    top.append('; @launch grid=(256,1,1) block=(256,1,1) lds=163840')
    doc = open(os.path.join(os.path.dirname(os.path.abspath(__file__)), 'header.txt')).read().rstrip('\n').split('\n')
    out = top + ['.amdgcn_target "amdgcn-amd-amdhsa--gfx950"', '.text', f'.globl {NAME}_kernel', '.p2align 8',
                 f'.type {NAME}_kernel,@function'] + doc + [f'{NAME}_kernel:']
    out += lines
    out += ['.section .rodata,"a"', '.p2align 6', f'.amdhsa_kernel {NAME}_kernel',
            '  .amdhsa_next_free_vgpr 512', '  .amdhsa_next_free_sgpr 102', '  .amdhsa_accum_offset 256',
            '  .amdhsa_group_segment_fixed_size 0', '  .amdhsa_kernarg_size 112', '  .amdhsa_user_sgpr_count 2',
            '  .amdhsa_user_sgpr_kernarg_segment_ptr 1', '  .amdhsa_system_sgpr_workgroup_id_x 1', '.end_amdhsa_kernel']
    return '\n'.join(out) + '\n', nops


if __name__ == '__main__':
    opts = dict(kv.split('=') for kv in sys.argv[2:])
    txt, nops = build(opts)
    open(sys.argv[1], 'w').write(txt)
    print(f'wrote {sys.argv[1]}: {len(txt)} bytes, {txt.count(chr(10))} lines, {nops} pad states')
```
